```python
import torch

def _softmax(x, axis=-1):
    return torch.softmax(x, dim=axis)
def _gelu(x):
    return torch.nn.functional.gelu(x, approximate="tanh")
def _silu(x):
    return torch.nn.functional.silu(x)
def _sigmoid(x):
    return torch.sigmoid(x)
def _layernorm(x, axis=-1, eps=1e-5):
    m = x.mean(dim=axis, keepdim=True)
    v = x.var(dim=axis, keepdim=True, unbiased=False)
    return (x - m) / torch.sqrt(v + eps)
def _scatter_add(tgt, idx, src, axis=0):
    return tgt.clone().index_add_(axis, idx, src)
def _segment_sum(src, seg, n):
    out = torch.zeros((n,) + src.shape[1:], dtype=src.dtype)
    return out.index_add_(0, seg, src)
def _pad(x, pw):
    flat = tuple(v for pair in reversed(pw) for v in pair)
    return torch.nn.functional.pad(x, flat)

kernel_name = 'sequential_preLN__ssm_conv_s4d__glu_gated_geglu__prompt'

def setup_inputs():

    _w = (lambda a: (lambda t: t.to(torch.bfloat16) if t.is_floating_point() else t)(torch.as_tensor(a)))
    def _A_setup():
        Bsz, L, D, N = 1, 2048, 640, 128
        return {
            "u": _w((lambda *s: torch.randn(*s, dtype=torch.bfloat16) * 0.05)(Bsz, L, D)),
            "log_A_real": _w((lambda *s: torch.randn(*s, dtype=torch.bfloat16) * 6.4)(D, N) * 0.5),
            "A_imag": _w((lambda *s: torch.randn(*s, dtype=torch.bfloat16) * 0.05)(D, N) * 3.14),
            "C_real": _w((lambda *s: torch.randn(*s, dtype=torch.bfloat16) * 0.05)(D, N) / N ** 0.5),
            "C_imag": _w((lambda *s: torch.randn(*s, dtype=torch.bfloat16) * 0.05)(D, N) / N ** 0.5),
            "log_dt": _w((lambda *s: torch.randn(*s, dtype=torch.bfloat16) * 0.05)(D) * 0.5 - 4.0),
            "D_skip": _w((lambda *s: torch.randn(*s, dtype=torch.bfloat16) * 0.05)(D)),
        }
    _A_in = _A_setup()

    def _B_setup():
        B, S, Dm, Df = 1, 2048, 640, 1728
        return {
            "x": _w((lambda *s: torch.randn(*s, dtype=torch.bfloat16) * 0.05)(B, S, Dm)),
            "w_gate": _w((lambda *s: torch.randn(*s, dtype=torch.bfloat16) * 0.4)(Dm, Df) * (Dm ** -0.5)),
            "w_up": _w((lambda *s: torch.randn(*s, dtype=torch.bfloat16) * 0.4)(Dm, Df) * (Dm ** -0.5)),
            "w_down": _w((lambda *s: torch.randn(*s, dtype=torch.bfloat16) * 0.4)(Df, Dm) * (Df ** -0.5)),
        }
    _B_in = _B_setup()

    return {
        "A_u": _A_in["u"],
        "A_log_A_real": _A_in["log_A_real"],
        "A_A_imag": _A_in["A_imag"],
        "A_C_real": _A_in["C_real"],
        "A_C_imag": _A_in["C_imag"],
        "A_log_dt": _A_in["log_dt"],
        "A_D_skip": _A_in["D_skip"],
        "B_x": _B_in["x"],
        "B_w_gate": _B_in["w_gate"],
        "B_w_up": _B_in["w_up"],
        "B_w_down": _B_in["w_down"],
    }

def reference(A_u, A_log_A_real, A_A_imag, A_C_real, A_C_imag, A_log_dt, A_D_skip, B_x, B_w_gate, B_w_up, B_w_down):
    def _A_ref(u, log_A_real, A_imag, C_real, C_imag, log_dt, D_skip):
        L = u.shape[1]
        dt = torch.exp(log_dt)
        A = -torch.exp(log_A_real) + 1j * A_imag
        C = (C_real + 1j * C_imag) * dt[:, None]
        pos = (lambda x, dt: x.to(dt))(torch.arange(L), log_dt.dtype)
        P = torch.exp((A * dt[:, None])[:, :, None] * pos[None, None, :])
        K = 2.0 * torch.einsum("dn,dnl->dl", C, P).real
        L2 = 2 * L
        u_t = (lambda x, *d: x.permute(*d))(u, 0, 2, 1)
        Kf = (lambda x, *a, **k: torch.fft.rfft(x.float(), *a, **k))(K, L2)
        Uf = (lambda x, *a, **k: torch.fft.rfft(x.float(), *a, **k))(u_t, L2)
        y = (lambda x, *a, **k: torch.fft.irfft(x, *a, **k).to(torch.bfloat16))(Uf * Kf[None, :, :], L2)[:, :, :L]
        y = (lambda x, *d: x.permute(*d))(y, 0, 2, 1)
        return y + u * D_skip[None, None, :]

    def _B_ref(x, w_gate, w_up, w_down):
        g = torch.einsum("bsd,df->bsf", x, w_gate)
        u = torch.einsum("bsd,df->bsf", x, w_up)
        h = _gelu(g) * u
        return torch.einsum("bsf,fd->bsd", h, w_down)

    x = A_u
    h = x + _A_ref(_layernorm(x, axis=-1), A_log_A_real, A_A_imag, A_C_real, A_C_imag, A_log_dt, A_D_skip)
    h2 = h + _B_ref(_layernorm(h, axis=-1), B_w_gate, B_w_up, B_w_down)
    return h2
```

```python
import sys

OUT = "sequential_preLN__ssm_conv_s4d__glu_gated_geglu__prompt.s"

L, D, N, F = 2048, 640, 128, 1728

WS_UT = 0x0000000
WS_XT = 0x0300000
WS_K = 0x0600000
WS_H = 0x0C00000
WS_HL = 0x0F00000
WS_WGT = 0x1200000
WS_WUT = 0x1500000
WS_WDT = 0x1800000
WS_HA = 0x1B00000
WS_SIZE = 0x10000000

KARG = dict(u=0, logA=8, Aim=16, Cr=24, Ci=32, logdt=40, dskip=48, bx=56, wg=64, wu=72, wd=80, out=88, dbg=96, ws=104)


class K:
    def __init__(self, name, vgpr, sgpr=102, accum=None):
        self.name = name
        self.lines = []
        self.vgpr = vgpr
        self.sgpr = sgpr
        self.accum = accum if accum is not None else ((vgpr + 3) // 4) * 4

    def __call__(self, s):
        for ln in s.strip("\n").split("\n"):
            ln = ln.strip()
            if ln.startswith("buffer_"):
                import re as _re
                m = _re.search(r"offset:(\d+)", ln)
                assert not m or int(m.group(1)) < 4096, ln
            if ln.startswith("ds_"):
                import re as _re
                m = _re.search(r"offset:(\d+)", ln)
                assert not m or int(m.group(1)) < 65536, ln
            self.lines.append("    " + ln)

    def label(self, s):
        self.lines.append(f"{self.name}_{s}:")

    def L(self, s):
        return f"{self.name}_{s}"

    def text(self):
        t = [f".globl {self.name}", ".p2align 8", f".type {self.name},@function", f"{self.name}:"]
        t += self.lines
        return "\n".join(t) + "\n"

    def desc(self):
        return f""".amdhsa_kernel {self.name}
  .amdhsa_next_free_vgpr {self.vgpr}
  .amdhsa_next_free_sgpr {self.sgpr}
  .amdhsa_accum_offset {self.accum}
  .amdhsa_group_segment_fixed_size 0
  .amdhsa_kernarg_size 112
  .amdhsa_user_sgpr_count 2
  .amdhsa_user_sgpr_kernarg_segment_ptr 1
  .amdhsa_system_sgpr_workgroup_id_x 1
.end_amdhsa_kernel
"""


def srd(k, sreg, karg_off, nbytes, base_add=0):
    k(f"s_load_dwordx2 s[{sreg}:{sreg+1}], s[0:1], {karg_off}")
    return (sreg, nbytes, base_add)


def srd_fin(k, t):
    sreg, nbytes, base_add = t
    if base_add:
        k(f"s_add_u32 s{sreg}, s{sreg}, {base_add}")
        k(f"s_addc_u32 s{sreg+1}, s{sreg+1}, 0")
    k(f"s_and_b32 s{sreg+1}, s{sreg+1}, 0xffff")
    k(f"s_mov_b32 s{sreg+2}, {nbytes}")
    k(f"s_mov_b32 s{sreg+3}, 0x00020000")


def gen_ln(name, first):
    k = K(name, 128)
    k("s_cmp_ge_u32 s2, 64")
    k(f"s_cbranch_scc1 {k.L('end')}")
    if first:
        a = srd(k, 4, KARG['u'], L * D * 2)
    else:
        a = srd(k, 4, KARG['ws'], L * D * 2, WS_H)
    b = srd(k, 8, KARG['ws'], WS_SIZE)
    k("s_waitcnt lgkmcnt(0)")
    srd_fin(k, a)
    srd_fin(k, b)
    k("v_and_b32 v1, 63, v0")
    k("v_lshrrev_b32 v2, 6, v0")
    k("s_lshl_b32 s3, s2, 5")
    k("v_lshlrev_b32 v3, 3, v2")
    k("v_add_u32 v3, s3, v3")
    k("v_mov_b32 v4, v3")
    k("s_movk_i32 s12, 1280")
    k("v_mul_lo_u32 v3, v3, s12")
    k("v_lshl_add_u32 v3, v1, 2, v3")
    for i in range(8):
        k(f"s_movk_i32 s{16+i}, {i*1280}")
    RAW = 16
    for i in range(8):
        for j in range(5):
            k(f"buffer_load_dword v{RAW+i*5+j}, v3, s[4:7], s{16+i} offen offset:{j*256}")
    for h, m in enumerate([1, 2, 4, 8, 16, 32]):
        k(f"v_xor_b32 v{6+h}, {m}, v1")
        k(f"v_lshlrev_b32 v{6+h}, 2, v{6+h}")
    k("s_waitcnt vmcnt(0)")
    SUM = 56
    TMP = 64
    MEAN = 72
    RS = 80
    k("s_mov_b32 s13, 0xffff0000")
    for i in range(8):
        k(f"v_mov_b32 v{SUM+i}, 0")
        for j in range(5):
            r = RAW + i * 5 + j
            k(f"v_lshlrev_b32 v12, 16, v{r}")
            k(f"v_and_b32 v13, s13, v{r}")
            k(f"v_add_f32 v{SUM+i}, v{SUM+i}, v12")
            k(f"v_add_f32 v{SUM+i}, v{SUM+i}, v13")

    def reduce8():
        for h in range(6):
            for i in range(8):
                k(f"ds_bpermute_b32 v{TMP+i}, v{6+h}, v{SUM+i}")
            k("s_waitcnt lgkmcnt(0)")
            for i in range(8):
                k(f"v_add_f32 v{SUM+i}, v{SUM+i}, v{TMP+i}")
    reduce8()
    k(f"v_mov_b32 v14, 0x3acccccd")
    for i in range(8):
        k(f"v_mul_f32 v{MEAN+i}, v{SUM+i}, v14")
    for i in range(8):
        k(f"v_mov_b32 v{SUM+i}, 0")
        for j in range(5):
            r = RAW + i * 5 + j
            k(f"v_lshlrev_b32 v12, 16, v{r}")
            k(f"v_and_b32 v13, s13, v{r}")
            k(f"v_sub_f32 v12, v12, v{MEAN+i}")
            k(f"v_sub_f32 v13, v13, v{MEAN+i}")
            k(f"v_fmac_f32 v{SUM+i}, v12, v12")
            k(f"v_fmac_f32 v{SUM+i}, v13, v13")
    reduce8()
    k("v_mov_b32 v15, 0x3727c5ac")
    for i in range(8):
        k(f"v_mul_f32 v12, v{SUM+i}, v14")
        k(f"v_cvt_pk_bf16_f32 v12, v12, v{MEAN+i}")
        k(f"v_and_b32 v{MEAN+i}, s13, v12")
        k(f"v_lshlrev_b32 v12, 16, v12")
        k(f"v_add_f32 v12, v12, v15")
        k(f"v_cvt_pk_bf16_f32 v12, v12, v12")
        k(f"v_lshlrev_b32 v12, 16, v12")
        k(f"v_sqrt_f32 v12, v12")
        k("s_nop 1")
        k(f"v_cvt_pk_bf16_f32 v12, v12, v12")
        k(f"v_lshlrev_b32 v12, 16, v12")
        k(f"v_rcp_f32 v{RS+i}, v12")
    k("s_nop 1")
    OUTA = 88
    if first:
        k("v_lshlrev_b32 v5, 13, v1")
        k("v_lshl_add_u32 v5, v4, 1, v5")
        k(f"s_mov_b32 s14, {WS_XT}")
        for j in range(5):
            for ip in range(4):
                i0, i1 = 2 * ip, 2 * ip + 1
                r0, r1 = RAW + i0 * 5 + j, RAW + i1 * 5 + j
                k(f"v_lshlrev_b32 v12, 16, v{r0}")
                k(f"v_lshlrev_b32 v13, 16, v{r1}")
                k(f"v_sub_f32 v12, v12, v{MEAN+i0}")
                k(f"v_sub_f32 v13, v13, v{MEAN+i1}")
                k(f"v_cvt_pk_bf16_f32 v12, v12, v13")
                k(f"v_and_b32 v13, s13, v12")
                k(f"v_lshlrev_b32 v12, 16, v12")
                k(f"v_mul_f32 v12, v12, v{RS+i0}")
                k(f"v_mul_f32 v13, v13, v{RS+i1}")
                k(f"v_cvt_pk_bf16_f32 v{OUTA+ip}, v12, v13")
                k(f"v_and_b32 v12, s13, v{r0}")
                k(f"v_and_b32 v13, s13, v{r1}")
                k(f"v_sub_f32 v12, v12, v{MEAN+i0}")
                k(f"v_sub_f32 v13, v13, v{MEAN+i1}")
                k(f"v_cvt_pk_bf16_f32 v12, v12, v13")
                k(f"v_and_b32 v13, s13, v12")
                k(f"v_lshlrev_b32 v12, 16, v12")
                k(f"v_mul_f32 v12, v12, v{RS+i0}")
                k(f"v_mul_f32 v13, v13, v{RS+i1}")
                k(f"v_cvt_pk_bf16_f32 v{OUTA+4+ip}, v12, v13")
                k(f"v_and_b32 v12, 0xffff, v{r0}")
                k(f"v_lshl_or_b32 v{OUTA+8+ip}, v{r1}, 16, v12")
                k(f"v_lshrrev_b32 v12, 16, v{r0}")
                k(f"v_and_or_b32 v{OUTA+12+ip}, v{r1}, s13, v12")
            k(f"s_mov_b32 s15, {WS_UT + j*524288}")
            k(f"buffer_store_dwordx4 v[{OUTA}:{OUTA+3}], v5, s[8:11], s15 offen")
            k(f"s_mov_b32 s15, {WS_UT + j*524288 + 4096}")
            k(f"buffer_store_dwordx4 v[{OUTA+4}:{OUTA+7}], v5, s[8:11], s15 offen")
            k(f"s_mov_b32 s15, {WS_XT + j*524288}")
            k(f"buffer_store_dwordx4 v[{OUTA+8}:{OUTA+11}], v5, s[8:11], s15 offen")
            k(f"s_mov_b32 s15, {WS_XT + j*524288 + 4096}")
            k(f"buffer_store_dwordx4 v[{OUTA+12}:{OUTA+15}], v5, s[8:11], s15 offen")
            k("s_nop 1")
    else:
        for i in range(8):
            for j in range(5):
                r = RAW + i * 5 + j
                k(f"v_lshlrev_b32 v12, 16, v{r}")
                k(f"v_and_b32 v13, s13, v{r}")
                k(f"v_sub_f32 v12, v12, v{MEAN+i}")
                k(f"v_sub_f32 v13, v13, v{MEAN+i}")
                k(f"v_cvt_pk_bf16_f32 v12, v12, v13")
                k(f"v_and_b32 v13, s13, v12")
                k(f"v_lshlrev_b32 v12, 16, v12")
                k(f"v_mul_f32 v12, v12, v{RS+i}")
                k(f"v_mul_f32 v13, v13, v{RS+i}")
                k(f"v_cvt_pk_bf16_f32 v{r}, v12, v13")
            k(f"s_add_u32 s15, s{16+i}, {WS_HL}")
            for j in range(5):
                r = RAW + i * 5 + j
                k(f"buffer_store_dword v{r}, v3, s[8:11], s15 offen offset:{j*256}")
    k.label("end")
    k("s_endpgm")
    return k


def gen_transpose(name, karg_src, R, C, ws_dst):
    k = K(name, 64)
    ntile_c = C // 64
    nt = (R // 64) * ntile_c
    k(f"s_cmp_ge_u32 s2, {nt}")
    k(f"s_cbranch_scc1 {k.L('end')}")
    a = srd(k, 4, karg_src, R * C * 2)
    b = srd(k, 8, KARG['ws'], R * C * 2, ws_dst)
    k("s_waitcnt lgkmcnt(0)")
    srd_fin(k, a)
    srd_fin(k, b)
    magic = (1 << 32) // ntile_c + 1
    k(f"s_mov_b32 s12, {magic}")
    k("s_mul_hi_u32 s13, s2, s12")
    k(f"s_mul_i32 s14, s13, {ntile_c}")
    k("s_sub_u32 s14, s2, s14")
    k("v_lshrrev_b32 v1, 2, v0")
    k("v_and_b32 v2, 3, v0")
    k("s_lshl_b32 s15, s13, 6")
    k("v_add_u32 v3, s15, v1")
    k(f"s_movk_i32 s16, {C*2}")
    k("v_mul_lo_u32 v3, v3, s16")
    k("s_lshl_b32 s17, s14, 7")
    k("v_lshl_add_u32 v4, v2, 5, s17")
    k("v_add_u32 v3, v3, v4")
    k("buffer_load_dwordx4 v[8:11], v3, s[4:7], 0 offen")
    k("buffer_load_dwordx4 v[12:15], v3, s[4:7], 0 offen offset:16")
    k("s_movk_i32 s18, 2080")
    k("v_mul_lo_u32 v5, v2, s18")
    k("v_lshl_add_u32 v5, v1, 1, v5")
    k("s_waitcnt vmcnt(0)")
    for e in range(16):
        r = 8 + e // 2
        if e % 2 == 0:
            k(f"ds_write_b16 v5, v{r} offset:{e*130}")
        else:
            k(f"ds_write_b16_d16_hi v5, v{r} offset:{e*130}")
    k("s_waitcnt lgkmcnt(0)")
    k("s_barrier")
    k("s_movk_i32 s18, 130")
    k("v_mul_lo_u32 v5, v1, s18")
    k("v_lshl_add_u32 v5, v2, 5, v5")
    k("ds_read_b128 v[8:11], v5")
    k("ds_read_b128 v[12:15], v5 offset:16")
    k("s_lshl_b32 s15, s14, 6")
    k("v_add_u32 v3, s15, v1")
    k(f"s_movk_i32 s16, {R*2}")
    k("v_mul_lo_u32 v3, v3, s16")
    k("s_lshl_b32 s17, s13, 7")
    k("v_lshl_add_u32 v4, v2, 5, s17")
    k("v_add_u32 v3, v3, v4")
    k("s_waitcnt lgkmcnt(0)")
    k("buffer_store_dwordx4 v[8:11], v3, s[8:11], 0 offen")
    k("buffer_store_dwordx4 v[12:15], v3, s[8:11], 0 offen offset:16")
    k.label("end")
    k("s_endpgm")
    return k


def gen_kgen(name):
    k = K(name, 96)
    k("s_cmp_ge_u32 s2, 160")
    k(f"s_cbranch_scc1 {k.L('end')}")
    t = [srd(k, 4, KARG['logA'], D * N * 2), srd(k, 8, KARG['Aim'], D * N * 2), srd(k, 12, KARG['Cr'], D * N * 2),
         srd(k, 16, KARG['Ci'], D * N * 2), srd(k, 20, KARG['logdt'], D * 2), srd(k, 24, KARG['ws'], WS_SIZE)]
    k("s_waitcnt lgkmcnt(0)")
    for x in t:
        srd_fin(k, x)
    k("v_and_b32 v1, 63, v0")
    k("v_lshrrev_b32 v2, 6, v0")
    k("s_lshl_b32 s3, s2, 2")
    k("v_add_u32 v3, s3, v2")
    k("v_lshlrev_b32 v4, 8, v3")
    k("v_lshl_add_u32 v4, v1, 1, v4")
    for idx, s in enumerate([4, 8, 12, 16]):
        k(f"buffer_load_ushort v{8+2*idx}, v4, s[{s}:{s+3}], 0 offen")
        k(f"buffer_load_ushort v{9+2*idx}, v4, s[{s}:{s+3}], 0 offen offset:128")
    k("v_lshlrev_b32 v5, 1, v3")
    k("buffer_load_ushort v16, v5, s[20:23], 0 offen")
    k("s_waitcnt vmcnt(0)")
    for r in range(8, 17):
        k(f"v_lshlrev_b32 v{r}, 16, v{r}")
    k("v_mov_b32 v17, 0x3fb8aa3b")
    k("v_mul_f32 v16, v16, v17")
    k("v_exp_f32 v16, v16")
    k("v_mul_f32 v8, v8, v17")
    k("v_mul_f32 v9, v9, v17")
    k("v_exp_f32 v8, v8")
    k("v_exp_f32 v9, v9")
    k("s_nop 1")
    k("v_cvt_pk_bf16_f32 v16, v16, v16")
    k("v_lshlrev_b32 v16, 16, v16")
    k("v_cvt_pk_bf16_f32 v8, v8, v9")
    k("s_mov_b32 s28, 0xffff0000")
    k("v_and_b32 v9, s28, v8")
    k("v_lshlrev_b32 v8, 16, v8")
    k("v_mul_f32 v8, v8, v16")
    k("v_mul_f32 v9, v9, v16")
    k("v_mul_f32 v8, v8, v17")
    k("v_mul_f32 v9, v9, v17")
    k("v_sub_f32 v8, 0, v8")
    k("v_sub_f32 v9, 0, v9")
    k("v_mov_b32 v18, 0x3e22f983")
    k("v_mul_f32 v10, v10, v16")
    k("v_mul_f32 v11, v11, v16")
    k("v_mul_f32 v10, v10, v18")
    k("v_mul_f32 v11, v11, v18")
    for r in (12, 13, 14, 15):
        k(f"v_mul_f32 v{r}, v{r}, v16")
        k(f"v_add_f32 v{r}, v{r}, v{r}")
    k("v_and_b32 v20, 31, v1")
    k("v_lshlrev_b32 v21, 3, v20")
    k("v_cvt_f32_u32 v21, v21")
    k("v_mov_b32 v22, v20")
    k("v_subrev_u32 v23, 8, v20")
    k("v_lshl_add_u32 v23, v23, 1, 0x100") if False else None
    k("v_lshlrev_b32 v23, 1, v23")
    k("v_add_u32 v23, 0x100, v23")
    k("v_cmp_le_u32 vcc, 8, v20")
    k("s_nop 1")
    k("v_cndmask_b32 v22, v22, v23, vcc")
    k("v_subrev_u32 v23, 12, v20")
    k("v_and_b32 v24, 1, v23")
    k("v_lshlrev_b32 v24, 2, v24")
    k("v_lshrrev_b32 v23, 1, v23")
    k("v_lshl_add_u32 v23, v23, 8, v24")
    k("v_add_u32 v23, 0x200, v23")
    k("v_cmp_le_u32 vcc, 12, v20")
    k("s_nop 1")
    k("v_cndmask_b32 v22, v22, v23, vcc")
    k("v_subrev_u32 v23, 16, v20")
    k("v_lshlrev_b32 v23, 8, v23")
    k("v_add_u32 v23, 0x400, v23")
    k("v_cmp_le_u32 vcc, 16, v20")
    k("s_nop 1")
    k("v_cndmask_b32 v22, v22, v23, vcc")
    k("v_mov_b32 v23, 0x800")
    k("v_cmp_le_u32 vcc, 20, v20")
    k("s_nop 1")
    k("v_cndmask_b32 v22, v22, v23, vcc")
    k("v_mov_b32 v25, v22")
    k("v_cvt_f32_u32 v22, v22")
    k("v_cmp_le_u32 s[30:31], 32, v1")
    k("v_mov_b32 v26, 0")
    k("v_mov_b32 v27, 0xbe800000")
    k("s_nop 1")
    k("v_cndmask_b32 v26, v26, v27, s[30:31]")
    ACC = 32
    for r in range(16):
        k(f"v_mov_b32 v{ACC+r}, 0")
    for half in range(2):
        k("s_mov_b32 s32, 0")
        k.label(f"nl{half}")
        k(f"v_readlane_b32 s33, v{8+half}, s32")
        k(f"v_readlane_b32 s34, v{10+half}, s32")
        k(f"v_readlane_b32 s35, v{12+half}, s32")
        k(f"v_readlane_b32 s36, v{14+half}, s32")
        k("s_nop 3")
        k("v_mul_f32 v50, s33, v21")
        k("v_fma_f32 v51, s34, v21, v26")
        k("v_exp_f32 v50, v50")
        k("v_fract_f32 v51, v51")
        k("v_mul_f32 v52, s33, v22")
        k("v_mul_f32 v53, s34, v22")
        k("v_cos_f32 v51, v51")
        k("v_exp_f32 v52, v52")
        k("v_fract_f32 v53, v53")
        k("s_nop 0")
        k("v_cos_f32 v54, v53")
        k("v_sin_f32 v55, v53")
        k("v_mul_f32 v50, v50, v51")
        k("s_nop 0")
        k("v_mul_f32 v56, s35, v54")
        k("v_mul_f32 v57, s36, v55")
        k("v_sub_f32 v56, v56, v57")
        k("v_mul_f32 v57, s35, v55")
        k("v_mul_f32 v58, s36, v54")
        k("v_add_f32 v57, v57, v58")
        k("v_sub_f32 v57, 0, v57")
        k("v_cndmask_b32 v56, v56, v57, s[30:31]")
        k("v_mul_f32 v56, v56, v52")
        k("s_nop 1")
        k(f"v_mfma_f32_32x32x2_f32 v[{ACC}:{ACC+15}], v56, v50, v[{ACC}:{ACC+15}]")
        k("s_add_u32 s32, s32, 1")
        k("s_cmp_lt_u32 s32, 64")
        k(f"s_cbranch_scc1 {k.L(f'nl{half}')}")
    k("s_nop 15")
    k("s_nop 3")
    k("s_movk_i32 s37, 8448")
    k("s_movk_i32 s43, 0x800")
    k("v_mul_lo_u32 v59, v2, s37")
    k("v_lshrrev_b32 v60, 5, v1")
    k("v_lshlrev_b32 v60, 2, v60")
    for r in range(16):
        row0 = 8 * (r >> 2) + (r & 3)
        k(f"v_add_u32 v61, {row0}, v60")
        k("v_lshlrev_b32 v62, 2, v61")
        k("ds_bpermute_b32 v63, v62, v25")
        k("s_waitcnt lgkmcnt(0)")
        k("v_lshl_add_u32 v63, v20, 3, v63")
        k("v_cmp_gt_u32 vcc, 21, v61")
        k("v_cmp_ge_u32 s[38:39], s43, v63")
        k("s_and_b64 vcc, vcc, s[38:39]")
        k("v_lshl_add_u32 v63, v63, 2, v59")
        k("s_and_saveexec_b64 s[40:41], vcc")
        k(f"ds_write_b32 v63, v{ACC+r}")
        k("s_mov_b64 exec, s[40:41]")
    k("s_waitcnt lgkmcnt(0)")
    k("s_barrier")
    k("v_lshlrev_b32 v64, 13, v3")
    k("v_lshl_add_u32 v64, v1, 4, v64")
    k(f"s_mov_b32 s42, {WS_K}")
    k(f"s_mov_b32 s44, {WS_K+4096}")
    for it in range(8):
        for e in range(4):
            k(f"v_lshlrev_b32 v65, 2, v1")
            k(f"v_add_u32 v65, {it*256+e}, v65")
            k("v_cvt_f32_u32 v65, v65")
            k("v_cvt_pk_bf16_f32 v65, v65, v65")
            k("v_lshlrev_b32 v65, 16, v65")
            k("v_cvt_u32_f32 v65, v65")
            k("v_lshl_add_u32 v65, v65, 2, v59")
            k(f"ds_read_b32 v{68+e}, v65")
        k("s_waitcnt lgkmcnt(0)")
        k(f"buffer_store_dwordx4 v[68:71], v64, s[24:27], s{42 if it<4 else 44} offen offset:{(it%4)*1024}")
        k("s_nop 1")
    k.label("end")
    k("s_endpgm")
    return k


def gen_conv(name):
    WAVE_LDS = 8192 + 4224
    k = K(name, 128)
    k("s_cmp_ge_u32 s2, 160")
    k(f"s_cbranch_scc1 {k.L('end')}")
    t = [srd(k, 4, KARG['ws'], WS_SIZE), srd(k, 8, KARG['dskip'], D * 2)]
    k("s_waitcnt lgkmcnt(0)")
    for x in t:
        srd_fin(k, x)
    k("v_and_b32 v1, 63, v0")
    k("v_lshrrev_b32 v2, 6, v0")
    k("s_lshl_b32 s3, s2, 2")
    k("v_add_u32 v3, s3, v2")
    k(f"s_movk_i32 s12, {WAVE_LDS}")
    k("v_mul_lo_u32 v4, v2, s12")
    k("v_lshlrev_b32 v5, 12, v3")
    k("v_lshl_add_u32 v5, v1, 4, v5")
    k(f"s_mov_b32 s13, {WS_UT}")
    for it in range(4):
        k(f"buffer_load_dwordx4 v[{16+4*it}:{19+4*it}], v5, s[4:7], s13 offen offset:{it*1024}")
    k("v_lshlrev_b32 v6, 13, v3")
    k("v_lshl_add_u32 v6, v1, 4, v6")
    k(f"s_mov_b32 s14, {WS_K}")
    k(f"s_mov_b32 s15, {WS_K+4096}")
    for it in range(8):
        k(f"buffer_load_dwordx4 v[{32+4*it}:{35+4*it}], v6, s[4:7], s{14 if it<4 else 15} offen offset:{(it%4)*1024}")
    k("v_lshlrev_b32 v7, 1, v3")
    k("buffer_load_ushort v15, v7, s[8:11], 0 offen")
    k("v_mov_b32 v64, 0")
    k("v_mov_b32 v65, 0")
    k("v_mov_b32 v66, 0")
    k("v_mov_b32 v67, 0")
    k("v_lshl_add_u32 v8, v1, 4, v4")
    for it in range(4):
        k(f"ds_write_b128 v8, v[64:67] offset:{it*1024}")
    k("v_cmp_gt_u32 vcc, 8, v1")
    k("s_and_saveexec_b64 s[16:17], vcc")
    k(f"ds_write_b128 v8, v[64:67] offset:{8192+4096}")
    k("s_mov_b64 exec, s[16:17]")
    k("s_waitcnt vmcnt(0)")
    for it in range(4):
        k(f"ds_write_b128 v8, v[{16+4*it}:{19+4*it}] offset:{4096+it*1024}")
    k("v_lshlrev_b32 v9, 3, v1")
    k("v_sub_u32 v9, v4, v9")
    k(f"v_add_u32 v9, {8192+4088}, v9")
    for it in range(8):
        b = 32 + 4 * it
        k(f"v_cvt_pk_bf16_f32 v64, v{b+3}, v{b+2}")
        k(f"v_cvt_pk_bf16_f32 v65, v{b+1}, v{b}")
        k(f"v_subrev_u32 v10, {it*512}, v9")
        k("ds_write_b64 v10, v[64:65]")
        k("s_nop 0")
    k("v_lshlrev_b32 v15, 16, v15")
    k("s_waitcnt lgkmcnt(0)")
    k("s_barrier")
    k("v_and_b32 v11, 31, v1")
    k("v_lshrrev_b32 v12, 5, v1")
    k("v_lshlrev_b32 v13, 4, v12")
    k("v_lshlrev_b32 v14, 1, v11")
    k("v_sub_u32 v13, v13, v14")
    k(f"v_add_u32 v13, {8192+4094}, v13")
    k("v_add_u32 v13, v13, v4")
    k("v_lshlrev_b32 v14, 6, v11")
    k("v_lshl_add_u32 v14, v12, 4, v14")
    k("v_add_u32 v14, 4096, v14")
    k("v_add_u32 v14, v14, v4")
    k("v_mov_b32 v112, v14")
    ACC0, ACC1 = 64, 80
    for r in range(32):
        k(f"v_mov_b32 v{ACC0+r}, 0")
    k("s_mov_b32 s18, 0")
    k.label("p1")
    k("ds_read_b128 v[16:19], v13")
    k("ds_read_b128 v[20:23], v13 offset:32")
    k("ds_read_b128 v[24:27], v14")
    k("ds_read_b128 v[28:31], v14 offset:32")
    k("ds_read_b128 v[32:35], v14 offset:2048")
    k("ds_read_b128 v[36:39], v14 offset:2080")
    k("v_subrev_u32 v13, 64, v13")
    k("v_subrev_u32 v14, 64, v14")
    k("s_waitcnt lgkmcnt(0)")
    k(f"v_mfma_f32_32x32x16_bf16 v[{ACC0}:{ACC0+15}], v[16:19], v[24:27], v[{ACC0}:{ACC0+15}]")
    k(f"v_mfma_f32_32x32x16_bf16 v[{ACC1}:{ACC1+15}], v[16:19], v[32:35], v[{ACC1}:{ACC1+15}]")
    k(f"v_mfma_f32_32x32x16_bf16 v[{ACC0}:{ACC0+15}], v[20:23], v[28:31], v[{ACC0}:{ACC0+15}]")
    k(f"v_mfma_f32_32x32x16_bf16 v[{ACC1}:{ACC1+15}], v[20:23], v[36:39], v[{ACC1}:{ACC1+15}]")
    k("s_add_u32 s18, s18, 1")
    k("s_cmp_lt_u32 s18, 32")
    k(f"s_cbranch_scc1 {k.L('p1')}")
    k.label("p2")
    k("ds_read_b128 v[16:19], v13")
    k("ds_read_b128 v[20:23], v13 offset:32")
    k("ds_read_b128 v[32:35], v14 offset:2048")
    k("ds_read_b128 v[36:39], v14 offset:2080")
    k("v_subrev_u32 v13, 64, v13")
    k("v_subrev_u32 v14, 64, v14")
    k("s_waitcnt lgkmcnt(0)")
    k(f"v_mfma_f32_32x32x16_bf16 v[{ACC1}:{ACC1+15}], v[16:19], v[32:35], v[{ACC1}:{ACC1+15}]")
    k(f"v_mfma_f32_32x32x16_bf16 v[{ACC1}:{ACC1+15}], v[20:23], v[36:39], v[{ACC1}:{ACC1+15}]")
    k("s_add_u32 s18, s18, 1")
    k("s_cmp_lt_u32 s18, 64")
    k(f"s_cbranch_scc1 {k.L('p2')}")
    k("s_nop 15")
    k("s_mov_b32 s19, 0xffff0000")
    k(f"s_mov_b32 s20, {WS_XT}")
    k(f"s_mov_b32 s21, {WS_H}")
    k("s_movk_i32 s22, 1280")
    for cb in range(2):
        for rq in range(4):
            k("v_lshlrev_b32 v16, 5, v11")
            k(f"v_lshl_add_u32 v16, v12, 2, v16")
            k(f"v_add_u32 v16, {1024*cb+8*rq}, v16")
            k("v_lshl_add_u32 v17, v16, 1, v4")
            k("ds_read_b64 v[18:19], v17 offset:4096")
            k("v_lshlrev_b32 v20, 12, v3")
            k("v_lshl_add_u32 v20, v16, 1, v20")
            k("buffer_load_dwordx2 v[22:23], v20, s[4:7], s20 offen")
            k("v_mul_lo_u32 v21, v16, s22")
            k("v_lshl_add_u32 v21, v3, 1, v21")
            k("s_waitcnt vmcnt(0) lgkmcnt(0)")
            for e in range(4):
                acc = (ACC0 if cb == 0 else ACC1) + 4 * rq + e
                src_u = 18 + e // 2
                src_x = 22 + e // 2
                if e % 2 == 0:
                    k(f"v_lshlrev_b32 v24, 16, v{src_u}")
                    k(f"v_lshlrev_b32 v25, 16, v{src_x}")
                else:
                    k(f"v_and_b32 v24, s19, v{src_u}")
                    k(f"v_and_b32 v25, s19, v{src_x}")
                k("v_mul_f32 v24, v24, v15")
                k(f"v_cvt_pk_bf16_f32 v26, v24, v{acc}")
                k("v_and_b32 v27, s19, v26")
                k("v_lshlrev_b32 v26, 16, v26")
                k("v_add_f32 v26, v26, v27")
                k("v_cvt_pk_bf16_f32 v26, v26, v26")
                k("v_lshlrev_b32 v26, 16, v26")
                k("v_add_f32 v26, v26, v25")
                k("v_cvt_pk_bf16_f32 v26, v26, v26")
                k(f"buffer_store_short v26, v21, s[4:7], s21 offen offset:{e*1280}")
    k.label("end")
    k("s_endpgm")
    return k, 4 * WAVE_LDS


def gen_gemm(name, mode):
    Kdim = 640 if mode == 1 else 1728
    ntn = 27 if mode == 1 else 5
    nwg = 16 * ntn
    STR = 80
    TILE = 128 * STR
    k = K(name, 160)
    k(f"s_cmp_ge_u32 s2, {nwg}")
    k(f"s_cbranch_scc1 {k.L('end')}")
    t = [srd(k, 4, KARG['ws'], WS_SIZE), srd(k, 8, KARG['out'], L * D * 2)]
    k("s_waitcnt lgkmcnt(0)")
    for x in t:
        srd_fin(k, x)
    k("s_and_b32 s12, s2, 15")
    k("s_lshr_b32 s13, s2, 4")
    k("v_lshrrev_b32 v1, 1, v0")
    k("v_and_b32 v2, 1, v0")
    k("s_lshl_b32 s14, s12, 7")
    k("v_add_u32 v3, s14, v1")
    k(f"s_movk_i32 s15, {Kdim*2}")
    k("v_mul_lo_u32 v3, v3, s15")
    k("v_lshl_add_u32 v3, v2, 5, v3")
    if mode == 1:
        k("v_lshrrev_b32 v5, 5, v1")
        k("v_and_b32 v6, 1, v5")
        k("v_lshrrev_b32 v5, 1, v5")
        k("v_and_b32 v7, 31, v1")
        k("v_lshl_add_u32 v7, v5, 5, v7")
        k("s_lshl_b32 s14, s13, 6")
        k("v_add_u32 v7, s14, v7")
        k("v_mul_lo_u32 v4, v7, s15")
        k("v_lshl_add_u32 v4, v2, 5, v4")
        k(f"v_mov_b32 v8, {WS_WUT - WS_WGT}")
        k("v_mul_lo_u32 v8, v8, v6")
        k("v_add_u32 v4, v4, v8")
        k(f"s_mov_b32 s16, {WS_HL}")
        k(f"s_mov_b32 s17, {WS_WGT}")
    else:
        k("s_lshl_b32 s14, s13, 7")
        k("v_add_u32 v4, s14, v1")
        k("v_mul_lo_u32 v4, v4, s15")
        k("v_lshl_add_u32 v4, v2, 5, v4")
        k(f"s_mov_b32 s16, {WS_HA}")
        k(f"s_mov_b32 s17, {WS_WDT}")
    k(f"s_movk_i32 s18, {STR}")
    k("v_mul_lo_u32 v9, v1, s18")
    k("v_lshl_add_u32 v9, v2, 5, v9")
    k("v_and_b32 v10, 63, v0")
    k("v_lshrrev_b32 v11, 6, v0")
    k("v_and_b32 v12, 31, v10")
    k("v_lshrrev_b32 v13, 5, v10")
    k("v_and_b32 v14, 1, v11")
    k("v_lshrrev_b32 v15, 1, v11")
    k("v_lshl_add_u32 v16, v14, 6, v12")
    k("v_mul_lo_u32 v16, v16, s18")
    k("v_lshl_add_u32 v16, v13, 4, v16")
    k("v_lshl_add_u32 v17, v15, 6, v12")
    k("v_mul_lo_u32 v17, v17, s18")
    k("v_lshl_add_u32 v17, v13, 4, v17")
    k(f"v_add_u32 v17, {TILE}, v17")
    ACC = 64
    for r in range(64):
        k(f"v_mov_b32 v{ACC+r}, 0")
    nk = Kdim // 32
    k("buffer_load_dwordx4 v[20:23], v3, s[4:7], s16 offen")
    k("buffer_load_dwordx4 v[24:27], v3, s[4:7], s16 offen offset:16")
    k("buffer_load_dwordx4 v[28:31], v4, s[4:7], s17 offen")
    k("buffer_load_dwordx4 v[32:35], v4, s[4:7], s17 offen offset:16")
    k("s_waitcnt vmcnt(0)")
    k("ds_write_b128 v9, v[20:23]")
    k("ds_write_b128 v9, v[24:27] offset:16")
    k(f"ds_write_b128 v9, v[28:31] offset:{TILE}")
    k(f"ds_write_b128 v9, v[32:35] offset:{TILE+16}")
    k("s_waitcnt lgkmcnt(0)")
    k("s_barrier")
    k("s_mov_b32 s19, 0")
    k("s_mov_b32 s20, 0")
    k.label("loop")
    k("s_add_u32 s21, s19, 1")
    k(f"s_cmp_ge_u32 s21, {nk}")
    k(f"s_cbranch_scc1 {k.L('noload')}")
    k("s_lshl_b32 s22, s21, 6")
    k("s_add_u32 s23, s22, s16")
    k("s_add_u32 s24, s22, s17")
    k("buffer_load_dwordx4 v[20:23], v3, s[4:7], s23 offen")
    k("buffer_load_dwordx4 v[24:27], v3, s[4:7], s23 offen offset:16")
    k("buffer_load_dwordx4 v[28:31], v4, s[4:7], s24 offen")
    k("buffer_load_dwordx4 v[32:35], v4, s[4:7], s24 offen offset:16")
    k.label("noload")
    k("v_add_u32 v18, s20, v16")
    k("v_add_u32 v19, s20, v17")
    for kk in range(2):
        k(f"ds_read_b128 v[36:39], v19 offset:{kk*32}")
        k(f"ds_read_b128 v[40:43], v19 offset:{kk*32 + 32*STR}")
        k(f"ds_read_b128 v[44:47], v18 offset:{kk*32}")
        k(f"ds_read_b128 v[48:51], v18 offset:{kk*32 + 32*STR}")
        k("s_waitcnt lgkmcnt(0)")
        for wi in range(2):
            for xi in range(2):
                a = ACC + (wi * 2 + xi) * 16
                k(f"v_mfma_f32_32x32x16_bf16 v[{a}:{a+15}], v[{36+4*wi}:{39+4*wi}], v[{44+4*xi}:{47+4*xi}], v[{a}:{a+15}]")
    k(f"s_cmp_ge_u32 s21, {nk}")
    k(f"s_cbranch_scc1 {k.L('done')}")
    k(f"s_xor_b32 s20, s20, {2*TILE}")
    k("v_add_u32 v18, s20, v9")
    k("s_waitcnt vmcnt(0)")
    k("ds_write_b128 v18, v[20:23]")
    k("ds_write_b128 v18, v[24:27] offset:16")
    k(f"ds_write_b128 v18, v[28:31] offset:{TILE}")
    k(f"ds_write_b128 v18, v[32:35] offset:{TILE+16}")
    k("s_waitcnt lgkmcnt(0)")
    k("s_barrier")
    k("s_mov_b32 s19, s21")
    k(f"s_branch {k.L('loop')}")
    k.label("done")
    k("s_nop 15")
    k("s_mov_b32 s25, 0xffff0000")
    k("s_lshl_b32 s14, s12, 7")
    k("v_lshl_add_u32 v16, v14, 6, v12")
    k("v_add_u32 v16, s14, v16")
    if mode == 1:
        k("s_lshl_b32 s14, s13, 6")
        k("v_lshlrev_b32 v17, 5, v15")
        k("v_lshl_add_u32 v17, v13, 2, v17")
        k("v_add_u32 v17, s14, v17")
        k(f"s_movk_i32 s26, {F*2}")
        k("v_mul_lo_u32 v18, v16, s26")
        k("v_lshl_add_u32 v18, v17, 1, v18")
        k(f"s_mov_b32 s27, {WS_HA}")
        k(f"s_add_u32 s28, s27, {32*F*2}")
        k("v_mov_b32 v19, 0x3d372713")
        k("v_mov_b32 v20, 0x40135761")
        for xi in range(2):
            for rq in range(4):
                for e in range(4):
                    ga = ACC + (0 * 2 + xi) * 16 + 4 * rq + e
                    ua = ACC + (1 * 2 + xi) * 16 + 4 * rq + e
                    k(f"v_cvt_pk_bf16_f32 v21, v{ga}, v{ua}")
                    k("v_and_b32 v22, s25, v21")
                    k("v_lshlrev_b32 v21, 16, v21")
                    k("v_mul_f32 v23, v21, v21")
                    k("v_mul_f32 v23, v23, v19")
                    k("v_fma_f32 v23, v23, v21, v21")
                    k("v_mul_f32 v23, v23, v20")
                    k("v_exp_f32 v23, v23")
                    k("s_nop 0")
                    k("v_add_f32 v23, 1.0, v23")
                    k("v_rcp_f32 v23, v23")
                    k("s_nop 0")
                    k("v_fma_f32 v23, -v21, v23, v21")
                    k("v_cvt_pk_bf16_f32 v23, v23, v23")
                    k("v_lshlrev_b32 v23, 16, v23")
                    k(f"v_mul_f32 v{24+e}, v23, v22")
                k("v_cvt_pk_bf16_f32 v28, v24, v25")
                k("v_cvt_pk_bf16_f32 v29, v26, v27")
                k(f"buffer_store_dwordx2 v[28:29], v18, s[4:7], s{27+xi} offen offset:{rq*16}")
                k("s_nop 1")
    else:
        k("s_lshl_b32 s14, s13, 7")
        k("v_lshlrev_b32 v17, 6, v15")
        k("v_lshl_add_u32 v17, v13, 2, v17")
        k("v_add_u32 v17, s14, v17")
        k("s_movk_i32 s26, 1280")
        k("v_mul_lo_u32 v18, v16, s26")
        k("v_lshl_add_u32 v18, v17, 1, v18")
        k(f"s_mov_b32 s27, {WS_H}")
        k(f"s_add_u32 s28, s27, {32*1280}")
        k("s_mov_b32 s29, 0")
        k(f"s_mov_b32 s30, {32*1280}")
        for xi in range(2):
            for wi in range(2):
                for rq in range(4):
                    off = wi * 64 + rq * 16
                    k(f"buffer_load_dwordx2 v[20:21], v18, s[4:7], s{27+xi} offen offset:{off}")
                    k("s_waitcnt vmcnt(0)")
                    a = ACC + (wi * 2 + xi) * 16 + 4 * rq
                    k(f"v_cvt_pk_bf16_f32 v22, v{a}, v{a+1}")
                    k(f"v_cvt_pk_bf16_f32 v23, v{a+2}, v{a+3}")
                    for p in range(2):
                        k(f"v_lshlrev_b32 v24, 16, v{22+p}")
                        k(f"v_and_b32 v25, s25, v{22+p}")
                        k(f"v_lshlrev_b32 v26, 16, v{20+p}")
                        k(f"v_and_b32 v27, s25, v{20+p}")
                        k("v_add_f32 v24, v24, v26")
                        k("v_add_f32 v25, v25, v27")
                        k(f"v_cvt_pk_bf16_f32 v{28+p}, v24, v25")
                    k(f"buffer_store_dwordx2 v[28:29], v18, s[8:11], s{29+xi} offen offset:{off}")
                    k("s_nop 1")
    k.label("end")
    k("s_endpgm")
    return k, 4 * TILE


def main():
    kernels = []
    launches = []

    def add(kobj, grid, lds=0):
        kernels.append(kobj)
        launches.append(f"; @launch kernel={kobj.name} grid=({grid},1,1) block=(256,1,1) lds={lds}")

    add(gen_ln("ln1_kernel", True), 64)
    add(gen_kgen("kgen_kernel"), 160, 4 * 8448)
    add(gen_transpose("trg_kernel", KARG['wg'], 640, 1728, WS_WGT), 270, 64 * 130)
    add(gen_transpose("tru_kernel", KARG['wu'], 640, 1728, WS_WUT), 270, 64 * 130)
    add(gen_transpose("trd_kernel", KARG['wd'], 1728, 640, WS_WDT), 270, 64 * 130)
    kc, ldsc = gen_conv("conv_kernel")
    add(kc, 160, ldsc)
    add(gen_ln("ln2_kernel", False), 64)
    g1, l1 = gen_gemm("gemm1_kernel", 1)
    add(g1, 16 * 27, l1)
    g2, l2 = gen_gemm("gemm2_kernel", 2)
    add(g2, 16 * 5, l2)

    hdr = open(OUT + ".ref").read().split("; Override launch")[0]
    s = hdr + "\n".join(launches) + "\n"
    s += '.amdgcn_target "amdgcn-amd-amdhsa--gfx950"\n.text\n'
    for kk in kernels:
        s += kk.text()
    s += '.section .rodata,"a"\n'
    for kk in kernels:
        s += ".p2align 6\n" + kk.desc()
    open(OUT, "w").write(s)
    print("written", OUT, len(s))


if __name__ == "__main__":
    main()
```

```python
import os
EXP = os.environ.get('EXP', '')
from gen import K, srd, srd_fin, KARG, WS_SIZE, WS_UT, WS_XT, WS_KB, WS_HT, L, D

US = 80
UB = 64 * US
KS0 = 2 * UB
CS = 4160
LDS_BYTES = KS0 + 8 * CS


def gen_conv(name):
    k = K(name, 160)
    k(f"s_cmp_ge_u32 s2, {D}")
    k(f"s_cbranch_scc1 {k.L('end')}")
    t = [srd(k, 4, KARG['ws'], WS_SIZE), srd(k, 8, KARG['dskip'], D * 2)]
    k("v_lshlrev_b32 v1, 4, v0")
    k("s_lshl_b32 s12, s2, 12")
    k("s_waitcnt lgkmcnt(0)")
    for x in t:
        srd_fin(k, x)
    k(f"s_add_u32 s13, s12, {WS_UT}")
    k(f"s_add_u32 s14, s12, {WS_KB}")
    for it in range(4):
        k(f"buffer_load_dwordx4 v[{16+4*it}:{19+4*it}], v1, s[4:7], s13 offen offset:{it*1024}")
    for it in range(4):
        k(f"buffer_load_dwordx4 v[{32+8*it}:{35+8*it}], v1, s[4:7], s14 offen offset:{it*1024}")
        k(f"buffer_load_dwordx4 v[{36+8*it}:{39+8*it}], v1, s[4:7], s14 offen offset:{it*1024+16}")
    k("s_lshl_b32 s15, s2, 1")
    k("v_mov_b32 v2, s15")
    k("buffer_load_ushort v15, v2, s[8:11], 0 offen")
    k("v_and_b32 v11, 31, v0")
    k("v_lshrrev_b32 v12, 5, v0")
    k("v_lshlrev_b32 v112, 6, v11")
    k("v_lshl_add_u32 v112, v12, 3, v112")
    k(f"s_add_u32 s16, s12, {WS_XT}")
    k("s_mul_i32 s17, s2, 4224")
    k(f"s_add_u32 s17, s17, {WS_HT}")
    for cb in range(2):
        for rq in range(4):
            r = 96 + 2 * (cb * 4 + rq)
            k(f"buffer_load_dwordx2 v[{r}:{r+1}], v112, s[4:7], s16 offen offset:{2048*cb+16*rq}")
    for r in range(64, 68):
        k(f"v_mov_b32 v{r}, 0")
    for it in range(5):
        k(f"ds_write_b128 v1, v[64:67] offset:{it*1024}")
    k("v_mul_u32_u24 v3, 52, v0")
    k("v_lshrrev_b32 v3, 8, v3")
    k("v_mul_u32_u24 v4, 5, v3")
    k("v_sub_u32 v4, v0, v4")
    k(f"v_mul_u32_u24 v3, {CS}, v3")
    k("v_lshl_add_u32 v3, v4, 4, v3")
    k("v_cmp_gt_u32 vcc, 40, v0")
    k("s_and_saveexec_b64 s[20:21], vcc")
    k(f"ds_write_b128 v3, v[64:67] offset:{KS0 + 4080}")
    k("s_mov_b64 exec, s[20:21]")
    k("v_lshrrev_b32 v5, 2, v0")
    k(f"v_mul_u32_u24 v5, {US}, v5")
    k("v_and_b32 v6, 3, v0")
    k("v_lshl_add_u32 v5, v6, 4, v5")
    k("s_waitcnt vmcnt(17)")
    k("s_waitcnt lgkmcnt(0)")
    for it in range(4):
        k(f"ds_write_b128 v5, v[{16+4*it}:{19+4*it}] offset:{UB + it*16*US}")
    k("s_waitcnt vmcnt(9)")
    k("v_cmp_eq_u32 vcc, 63, v0")
    k("s_nop 1")
    for i in range(4):
        k(f"v_cndmask_b32 v{36+24+i}, v{36+24+i}, v64, vcc")
    for it in range(4):
        d0 = 32 + 8 * it
        for c in range(8):
            s = 7 - c
            off = KS0 + c * CS + it * 1024
            if s % 2 == 0:
                tt = s // 2
                k(f"ds_write_b128 v1, v[{d0+tt}:{d0+tt+3}] offset:{off}") if (d0 + tt) % 2 == 0 else None
                if (d0 + tt) % 2:
                    for i in range(4):
                        k(f"v_mov_b32 v{68+i}, v{d0+tt+i}")
                    k(f"ds_write_b128 v1, v[68:71] offset:{off}")
            else:
                tt = s // 2
                tr = 72 + 4 * (c & 1)
                for i in range(4):
                    k(f"v_alignbit_b32 v{tr+i}, v{d0+tt+i+1}, v{d0+tt+i}, 16")
                k(f"ds_write_b128 v1, v[{tr}:{tr+3}] offset:{off}")
    k("v_and_b32 v3, 7, v11")
    k(f"v_mul_u32_u24 v13, {CS}, v3")
    k("v_lshrrev_b32 v3, 3, v11")
    k("v_sub_u32 v3, v12, v3")
    k("v_lshl_add_u32 v13, v3, 4, v13")
    k(f"v_add_u32 v13, {KS0 + 4080 - 448}, v13")
    k(f"v_mul_u32_u24 v14, {US}, v11")
    k("v_lshl_add_u32 v14, v12, 4, v14")
    k(f"v_add_u32 v113, {UB}, v14")
    k(f"v_add_u32 v14, {UB - 7*US}, v14")
    k("v_lshlrev_b32 v3, 3, v12")
    k("v_sub_u32 v113, v113, v3")
    ACC0, ACC1 = 114, 130
    for r in range(32):
        k(f"v_mov_b32 v{ACC0+r}, 0")
    k("s_waitcnt lgkmcnt(0)")
    k("s_barrier")

    def reads(j, s, both):
        b = 16 + 24 * s
        oa = 64 * (7 - j)
        ob = US * (7 - j)
        k(f"ds_read_b128 v[{b}:{b+3}], v13 offset:{oa}")
        k(f"ds_read_b128 v[{b+4}:{b+7}], v13 offset:{oa+32}")
        if both:
            k(f"ds_read_b128 v[{b+8}:{b+11}], v14 offset:{ob}")
            k(f"ds_read_b128 v[{b+12}:{b+15}], v14 offset:{ob+32}")
        k(f"ds_read_b128 v[{b+16}:{b+19}], v14 offset:{ob+32*US}")
        k(f"ds_read_b128 v[{b+20}:{b+23}], v14 offset:{ob+32*US+32}")

    def mf(s, both):
        b = 16 + 24 * s
        if both:
            k(f"v_mfma_f32_32x32x16_bf16 v[{ACC0}:{ACC0+15}], v[{b}:{b+3}], v[{b+8}:{b+11}], v[{ACC0}:{ACC0+15}]")
        k(f"v_mfma_f32_32x32x16_bf16 v[{ACC1}:{ACC1+15}], v[{b}:{b+3}], v[{b+16}:{b+19}], v[{ACC1}:{ACC1+15}]")
        if both:
            k(f"v_mfma_f32_32x32x16_bf16 v[{ACC0}:{ACC0+15}], v[{b+4}:{b+7}], v[{b+12}:{b+15}], v[{ACC0}:{ACC0+15}]")
        k(f"v_mfma_f32_32x32x16_bf16 v[{ACC1}:{ACC1+15}], v[{b+4}:{b+7}], v[{b+20}:{b+23}], v[{ACC1}:{ACC1+15}]")

    for phase in range(2):
        both = phase == 0
        n = 6 if both else 4
        k("s_mov_b32 s18, 0")
        reads(0, 0, both)
        k.label(f"p{phase}")
        for j in range(8):
            if j < 7:
                reads(j + 1, (j + 1) & 1, both)
            else:
                k("v_subrev_u32 v13, 512, v13")
                k(f"v_subrev_u32 v14, {8*US}, v14")
                if phase == 1:
                    k("v_max_i32 v13, 0, v13")
                    k("v_max_i32 v14, 0, v14")
                reads(0, 0, both)
            k(f"s_waitcnt lgkmcnt({n})")
            mf(j & 1, both)
        k("s_add_u32 s18, s18, 1")
        k("s_cmp_lt_u32 s18, 4")
        k(f"s_cbranch_scc1 {k.L(f'p{phase}')}")
        k("s_waitcnt lgkmcnt(0)")
    k("v_lshlrev_b32 v15, 16, v15")
    k("s_mov_b32 s19, 0xffff0000")
    for cb in range(2):
        for rq in range(4):
            u = 18 + 2 * (cb * 4 + rq)
            k(f"ds_read_b64 v[{u}:{u+1}], v113 offset:{32*US*cb+16*rq}")
    k("s_nop 4")
    k("s_waitcnt vmcnt(0) lgkmcnt(0)")
    for cb in range(2):
        for rq in range(4):
            u = 18 + 2 * (cb * 4 + rq)
            x = 96 + 2 * (cb * 4 + rq)
            for p in range(2):
                acc = (ACC0 if cb == 0 else ACC1) + 4 * rq + 2 * p
                k(f"v_lshlrev_b32 v40, 16, v{u+p}")
                k(f"v_and_b32 v41, s19, v{u+p}")
                k("v_mul_f32 v40, v40, v15")
                k("v_mul_f32 v41, v41, v15")
                k("v_cvt_pk_bf16_f32 v40, v40, v41")
                k(f"v_cvt_pk_bf16_f32 v42, v{acc}, v{acc+1}")
                k("v_lshlrev_b32 v41, 16, v40")
                k("v_and_b32 v40, s19, v40")
                k("v_lshlrev_b32 v43, 16, v42")
                k("v_and_b32 v42, s19, v42")
                k("v_add_f32 v41, v41, v43")
                k("v_add_f32 v40, v40, v42")
                k("v_cvt_pk_bf16_f32 v42, v41, v40")
                k(f"v_lshlrev_b32 v41, 16, v{x+p}")
                k(f"v_and_b32 v40, s19, v{x+p}")
                k("v_lshlrev_b32 v43, 16, v42")
                k("v_and_b32 v42, s19, v42")
                k("v_add_f32 v41, v41, v43")
                k("v_add_f32 v40, v40, v42")
                k(f"v_cvt_pk_bf16_f32 v{x+p}, v41, v40")
            k(f"buffer_store_dwordx2 v[{x}:{x+1}], v112, s[4:7], s17 offen offset:{2048*cb+16*rq}")
    k.label("end")
    k("s_endpgm")
    return k, LDS_BYTES
```

```python
import os
EXP = os.environ.get('EXP', '')
from gen import K, srd, srd_fin, KARG, WS_SIZE, WS_HL, WS_WGT, WS_WUT, WS_WDT, WS_HA, WS_H, L, D, F


def gen_gemm_dma(name, mode):
    Kdim = 640 if mode == 1 else 1728
    NW = 8 if mode == 1 else 4
    TX = 256 if mode == 1 else 128
    TW = 128 if mode == 1 else 64
    NS = 3 if mode == 1 else 4
    ntm = L // TX
    ntn = 27 if mode == 1 else 10
    nwg = ntm * ntn
    nk = Kdim // 64
    RB = Kdim * 2
    XT_BYTES = TX * 128
    WT_BYTES = TW * 128
    STAGE = XT_BYTES + WT_BYTES
    NWI = TW // 8 // NW
    LPW = 4 + NWI
    NWF = 2 if mode == 1 else 1
    lgm = {8: 3, 16: 4}[ntm]
    k = K(name, 200)
    k(f"s_cmp_ge_u32 s2, {nwg}")
    k(f"s_cbranch_scc1 {k.L('end')}")
    t = [srd(k, 4, KARG['ws'], WS_SIZE), srd(k, 8, KARG['out'], L * D * 2)]
    if 'stamp' in EXP:
        k("s_memtime s[60:61]")
    k("v_lshrrev_b32 v1, 6, v0")
    k("v_and_b32 v2, 63, v0")
    k(f"s_and_b32 s12, s2, {ntm - 1}")
    k("v_readfirstlane_b32 s14, v1")
    k(f"s_lshr_b32 s13, s2, {lgm}")
    k("v_lshrrev_b32 v3, 3, v2")
    k(f"s_movk_i32 s15, {RB}")
    k("v_mul_lo_u32 v3, v3, s15")
    k("v_and_b32 v4, 7, v2")
    k("v_lshrrev_b32 v5, 4, v2")
    k("v_xor_b32 v4, v4, v5")
    k("v_xor_b32 v5, 4, v4")
    k("v_lshl_add_u32 v4, v4, 4, v3")
    k("v_lshl_add_u32 v5, v5, 4, v3")
    VD = 6
    for i in range(4):
        k(f"v_add_u32 v{VD+i}, {i * 8 * RB - i * 1024}, v{4 + (i & 1)}")
    k("s_waitcnt lgkmcnt(0)")
    for x in t:
        srd_fin(k, x)
    k(f"s_mul_i32 s16, s12, {TX}")
    k("s_lshl_b32 s17, s14, 5")
    k("s_add_u32 s16, s16, s17")
    k("s_mul_i32 s16, s16, s15")
    k(f"s_add_u32 s16, s16, {WS_HL if mode == 1 else WS_HA}")
    if mode == 1:
        k("s_lshl_b32 s17, s13, 6")
        k("s_lshr_b32 s18, s14, 2")
        k("s_lshl_b32 s18, s18, 5")
        k("s_add_u32 s17, s17, s18")
        k("s_and_b32 s18, s14, 1")
        k("s_lshl_b32 s18, s18, 4")
        k("s_add_u32 s17, s17, s18")
        k("s_mul_i32 s17, s17, s15")
        k("s_lshr_b32 s18, s14, 1")
        k("s_and_b32 s18, s18, 1")
        k(f"s_mul_i32 s18, s18, {WS_WUT - WS_WGT}")
        k("s_add_u32 s17, s17, s18")
        k(f"s_add_u32 s17, s17, {WS_WGT}")
    else:
        k("s_lshl_b32 s17, s13, 6")
        k("s_lshl_b32 s18, s14, 4")
        k("s_add_u32 s17, s17, s18")
        k("s_mul_i32 s17, s17, s15")
        k(f"s_add_u32 s17, s17, {WS_WDT}")
    k("s_lshl_b32 s19, s14, 12")
    k("s_lshl_b32 s20, s14, 11")
    k(f"s_add_u32 s20, s20, {XT_BYTES}")

    def issue_stage(st):
        so = st * STAGE
        k(f"s_add_u32 m0, s19, {so}")
        k("s_nop 0")
        for i in range(4):
            if 'nodma' not in EXP: k(f"buffer_load_dwordx4 v{VD+i}, s[4:7], s16 offen offset:{i*1024} lds")
        k(f"s_add_u32 m0, s20, {so}")
        k("s_add_u32 s16, s16, 128")
        for i in range(NWI):
            if 'nodma' not in EXP: k(f"buffer_load_dwordx4 v{VD+i}, s[4:7], s17 offen offset:{i*1024} lds")
        k("s_add_u32 s17, s17, 128")

    for st in range(NS - 1):
        issue_stage(st)
    k("v_and_b32 v10, 31, v2")
    k("v_lshrrev_b32 v11, 5, v2")
    if mode == 1:
        k("v_and_b32 v12, 3, v1")
        k("v_lshrrev_b32 v13, 2, v1")
    else:
        k("v_and_b32 v12, 1, v1")
        k("v_lshrrev_b32 v13, 1, v1")
    k("v_lshrrev_b32 v14, 1, v10")
    k("v_and_b32 v14, 7, v14")
    k("v_xor_b32 v14, v14, v11")
    k("v_lshlrev_b32 v14, 4, v14")
    k("v_lshl_add_u32 v15, v12, 6, v10")
    k("v_lshl_add_u32 v15, v15, 7, v14")
    k(f"v_lshl_add_u32 v16, v13, {6 if mode == 1 else 5}, v10")
    k("v_lshl_add_u32 v16, v16, 7, v14")
    k(f"v_add_u32 v16, {XT_BYTES}, v16")
    SA = 20
    for st in range(NS):
        for kk in range(4):
            k(f"v_xor_b32 v{SA+8*st+kk}, {32*kk}, v15")
            k(f"v_xor_b32 v{SA+8*st+4+kk}, {32*kk}, v16")
            if st:
                k(f"v_add_u32 v{SA+8*st+kk}, {st*STAGE}, v{SA+8*st+kk}")
                k(f"v_add_u32 v{SA+8*st+4+kk}, {st*STAGE}, v{SA+8*st+4+kk}")
    FR = 56
    ACC = 120
    HR = 184
    nacc = NWF * 2
    for r in range(nacc * 16):
        k(f"v_mov_b32 v{ACC+r}, 0")
    k(f"s_mul_i32 s22, s12, {TX}")
    k("v_lshl_add_u32 v17, v12, 6, v10")
    k("v_add_u32 v17, s22, v17")
    k("s_lshl_b32 s22, s13, 6")
    k("v_lshlrev_b32 v18, 5, v13")
    k("v_lshl_add_u32 v18, v11, 2, v18")
    k("v_add_u32 v18, s22, v18")
    k(f"s_movk_i32 s26, {F*2 if mode == 1 else D*2}")
    k("v_mul_lo_u32 v17, v17, s26")
    k("v_lshl_add_u32 v17, v18, 1, v17")
    nextra = 0
    if mode == 2:
        k(f"s_mov_b32 s27, {WS_H}")
        k(f"s_add_u32 s28, s27, {32*1280}")
        for xi in range(2):
            for rq in range(4):
                hreg = HR + 2 * (xi * 4 + rq)
                k(f"buffer_load_dwordx2 v[{hreg}:{hreg+1}], v17, s[4:7], s{27+xi} offen offset:{rq*16}")
        nextra = 8

    def reads(st, kk):
        b = FR + 16 * kk
        if 'noread' in EXP: return
        for wi in range(NWF):
            k(f"ds_read_b128 v[{b+4*wi}:{b+4*wi+3}], v{SA+8*st+4+kk} offset:{wi*4096}")
        for xi in range(2):
            k(f"ds_read_b128 v[{b+8+4*xi}:{b+8+4*xi+3}], v{SA+8*st+kk} offset:{xi*4096}")

    def mfmas(kk):
        b = FR + 16 * kk
        for wi in range(NWF):
            for xi in range(2):
                a = ACC + (wi * 2 + xi) * 16
                if 'nomfma' not in EXP: k(f"v_mfma_f32_32x32x16_bf16 v[{a}:{a+15}], v[{b+4*wi}:{b+4*wi+3}], v[{b+8+4*xi}:{b+8+4*xi+3}], v[{a}:{a+15}]")
    nrd = NWF + 2

    def body(st, first=False):
        reads(st, 2)
        reads(st, 3)
        k(f"s_waitcnt lgkmcnt({3*nrd})")
        mfmas(0)
        k(f"s_waitcnt lgkmcnt({2*nrd})")
        mfmas(1)
        k(f"s_waitcnt vmcnt({(NS - 3) * LPW})")
        k("s_barrier")
        issue_stage((st + NS - 1) % NS)
        reads((st + 1) % NS, 0)
        reads((st + 1) % NS, 1)
        k(f"s_waitcnt lgkmcnt({3*nrd})")
        mfmas(2)
        k(f"s_waitcnt lgkmcnt({2*nrd})")
        mfmas(3)

    k(f"s_waitcnt vmcnt({(NS - 2) * LPW + nextra})")
    k("s_barrier")
    if 'stamp' in EXP:
        k("s_memtime s[62:63]")
    reads(0, 0)
    reads(0, 1)
    T = nk - 1
    P = T % NS
    for i in range(P):
        body(i % NS)
    k(f"s_mov_b32 s39, {T // NS}")
    k.label("loop")
    for j in range(NS):
        body((P + j) % NS)
    k("s_sub_u32 s39, s39, 1")
    k("s_cmp_lg_u32 s39, 0")
    k(f"s_cbranch_scc1 {k.L('loop')}")
    st = T % NS
    reads(st, 2)
    reads(st, 3)
    k(f"s_waitcnt lgkmcnt({3*nrd})")
    mfmas(0)
    k(f"s_waitcnt lgkmcnt({2*nrd})")
    mfmas(1)
    k(f"s_waitcnt lgkmcnt({nrd})")
    mfmas(2)
    k("s_waitcnt lgkmcnt(0)")
    mfmas(3)
    if 'stamp' in EXP:
        k("s_memtime s[64:65]")
    k("s_mov_b32 s25, 0xffff0000")
    if mode == 1:
        k(f"s_mov_b32 s27, {WS_HA}")
        k(f"s_add_u32 s28, s27, {32*F*2}")
        k("v_mov_b32 v19, 0x3d372713")
        k("v_mov_b32 v20, 0x40135761")
        k("s_nop 7")
        for xi in range(2):
            for rq in range(4):
                for e in range(4):
                    ga = ACC + xi * 16 + 4 * rq + e
                    ua = ACC + (2 + xi) * 16 + 4 * rq + e
                    t0 = 56 + 4 * e
                    k(f"v_cvt_pk_bf16_f32 v{t0}, v{ga}, v{ua}")
                    k(f"v_and_b32 v{t0+1}, s25, v{t0}")
                    k(f"v_lshlrev_b32 v{t0}, 16, v{t0}")
                    k(f"v_mul_f32 v{t0+2}, v{t0}, v{t0}")
                    k(f"v_mul_f32 v{t0+2}, v{t0+2}, v19")
                    k(f"v_fma_f32 v{t0+2}, v{t0+2}, v{t0}, v{t0}")
                    k(f"v_mul_f32 v{t0+2}, v{t0+2}, v20")
                for e in range(4):
                    k(f"v_exp_f32 v{58+4*e}, v{58+4*e}")
                k("s_nop 0")
                for e in range(4):
                    k(f"v_add_f32 v{58+4*e}, 1.0, v{58+4*e}")
                for e in range(4):
                    k(f"v_rcp_f32 v{58+4*e}, v{58+4*e}")
                k("s_nop 0")
                for e in range(4):
                    t0 = 56 + 4 * e
                    k(f"v_fma_f32 v{t0+2}, -v{t0}, v{t0+2}, v{t0}")
                    k(f"v_cvt_pk_bf16_f32 v{t0+2}, v{t0+2}, v{t0+2}")
                    k(f"v_lshlrev_b32 v{t0+2}, 16, v{t0+2}")
                    k(f"v_mul_f32 v{t0+3}, v{t0+2}, v{t0+1}")
                o = 72 + 2 * ((xi * 4 + rq) & 3)
                k(f"v_cvt_pk_bf16_f32 v{o}, v59, v63")
                k(f"v_cvt_pk_bf16_f32 v{o+1}, v67, v71")
                k(f"buffer_store_dwordx2 v[{o}:{o+1}], v17, s[4:7], s{27+xi} offen offset:{rq*16}")
    else:
        k("s_mov_b32 s29, 0")
        k(f"s_mov_b32 s30, {32*1280}")
        k("s_nop 7")
        k("s_nop 1")
        for xi in range(2):
            for rq in range(4):
                hreg = HR + 2 * (xi * 4 + rq)
                a = ACC + xi * 16 + 4 * rq
                k(f"v_cvt_pk_bf16_f32 v22, v{a}, v{a+1}")
                k(f"v_cvt_pk_bf16_f32 v23, v{a+2}, v{a+3}")
                for p in range(2):
                    k(f"v_lshlrev_b32 v24, 16, v{22+p}")
                    k(f"v_and_b32 v25, s25, v{22+p}")
                    k(f"v_lshlrev_b32 v26, 16, v{hreg+p}")
                    k(f"v_and_b32 v27, s25, v{hreg+p}")
                    k("v_add_f32 v24, v24, v26")
                    k("v_add_f32 v25, v25, v27")
                    k(f"v_cvt_pk_bf16_f32 v{hreg+p}, v24, v25")
                k(f"buffer_store_dwordx2 v[{hreg}:{hreg+1}], v17, s[8:11], s{29+xi} offen offset:{rq*16}")
    if 'stamp' in EXP:
        k("s_waitcnt vmcnt(0)")
        k("s_memtime s[66:67]")
        k("s_load_dwordx2 s[68:69], s[0:1], 96")
        k("s_waitcnt lgkmcnt(0)")
        k("s_and_b32 s69, s69, 0xffff")
        k("s_movk_i32 s70, 256")
        k("s_mov_b32 s71, 0x20000")
        k("s_sub_u32 s62, s62, s60")
        k("s_sub_u32 s64, s64, s60")
        k("s_sub_u32 s66, s66, s60")
        k("v_mov_b32 v1, s62")
        k("v_mov_b32 v2, s64")
        k("v_mov_b32 v3, s66")
        k("v_mov_b32 v0, 0")
        k("s_cmp_lg_u32 s2, 37")
        k(f"s_cbranch_scc1 {k.L('end')}")
        k("buffer_store_dwordx4 v[0:3], v0, s[68:71], 0 offen")
    k.label("end")
    k("s_endpgm")
    return k, NS * STAGE, nwg, NW * 64
```

```python
import os, struct
EXP = os.environ.get('EXP', '')
from gen import K, srd, srd_fin, KARG, WS_SIZE, WS_UT, WS_XT, WS_KB, WS_HT, WS_H, WS_HL, WS_WGT, WS_WUT, WS_WDT, L, D, N, F


def fbits(x):
    return "0x%08x" % struct.unpack("<I", struct.pack("<f", float(x)))[0]


HI = list(range(8)) + [256 + 2 * i for i in range(4)] + [512, 516, 768, 772] + [1024 + 256 * i for i in range(4)] + [2048]


def ln_core(k, VB, SUM, TMP, MEAN, RS, BP):
    for i in range(8):
        k(f"v_add_f32 v{SUM+i}, v{VB+i*10}, v{VB+i*10+1}")
        for e in range(2, 10):
            k(f"v_add_f32 v{SUM+i}, v{SUM+i}, v{VB+i*10+e}")

    def reduce8():
        for h in range(6):
            for i in range(8):
                k(f"ds_bpermute_b32 v{TMP+i}, v{BP+h}, v{SUM+i}")
            k("s_waitcnt lgkmcnt(0)")
            for i in range(8):
                k(f"v_add_f32 v{SUM+i}, v{SUM+i}, v{TMP+i}")
    reduce8()
    k("s_mov_b32 s40, 0x3acccccd")
    k("s_mov_b32 s41, 0xffff0000")
    for i in range(8):
        k(f"v_mul_f32 v{MEAN+i}, s40, v{SUM+i}")
    for i in range(8):
        k(f"v_sub_f32 v{TMP+i}, v{VB+i*10}, v{MEAN+i}")
        k(f"v_mul_f32 v{SUM+i}, v{TMP+i}, v{TMP+i}")
        for e in range(1, 10):
            k(f"v_sub_f32 v{TMP+i}, v{VB+i*10+e}, v{MEAN+i}")
            k(f"v_fmac_f32 v{SUM+i}, v{TMP+i}, v{TMP+i}")
    reduce8()
    for i in range(8):
        k(f"v_mul_f32 v{TMP+i}, s40, v{SUM+i}")
        k(f"v_cvt_pk_bf16_f32 v{TMP+i}, v{TMP+i}, v{MEAN+i}")
        k(f"v_and_b32 v{MEAN+i}, s41, v{TMP+i}")
        k(f"v_lshlrev_b32 v{TMP+i}, 16, v{TMP+i}")
        k(f"v_add_f32 v{TMP+i}, 0x3727c5ac, v{TMP+i}")
        k(f"v_cvt_pk_bf16_f32 v{TMP+i}, v{TMP+i}, v{TMP+i}")
        k(f"v_lshlrev_b32 v{TMP+i}, 16, v{TMP+i}")
    for i in range(8):
        k(f"v_sqrt_f32 v{TMP+i}, v{TMP+i}")
    k("s_nop 0")
    for i in range(8):
        k(f"v_cvt_pk_bf16_f32 v{TMP+i}, v{TMP+i}, v{TMP+i}")
        k(f"v_lshlrev_b32 v{TMP+i}, 16, v{TMP+i}")
    for i in range(8):
        k(f"v_rcp_f32 v{RS+i}, v{TMP+i}")
    k("s_nop 0")


def norm_pair(k, dst, a, ma, ra, b, mb, rb, t0, t1):
    k(f"v_sub_f32 v{t0}, v{a}, v{ma}")
    k(f"v_sub_f32 v{t1}, v{b}, v{mb}")
    k(f"v_cvt_pk_bf16_f32 v{t0}, v{t0}, v{t1}")
    k(f"v_and_b32 v{t1}, s41, v{t0}")
    k(f"v_lshlrev_b32 v{t0}, 16, v{t0}")
    k(f"v_mul_f32 v{t0}, v{t0}, v{ra}")
    k(f"v_mul_f32 v{t1}, v{t1}, v{rb}")
    k(f"v_cvt_pk_bf16_f32 v{dst}, v{t0}, v{t1}")


def bp_addrs(k, BP, lane):
    for h, m in enumerate([1, 2, 4, 8, 16, 32]):
        k(f"v_xor_b32 v{BP+h}, {m}, v{lane}")
        k(f"v_lshlrev_b32 v{BP+h}, 2, v{BP+h}")


VB, SUM, TMP, MEAN, RS, BP = 64, 16, 24, 32, 40, 48


def role_ln1(k):
    k("v_and_b32 v1, 63, v0")
    k("v_lshrrev_b32 v2, 6, v0")
    k("s_lshl_b32 s3, s2, 5")
    k("v_lshlrev_b32 v4, 3, v2")
    k("v_add_u32 v4, s3, v4")
    k("s_movk_i32 s12, 1280")
    k("v_mul_lo_u32 v3, v4, s12")
    k("v_lshl_add_u32 v3, v1, 2, v3")
    RAW = 144
    for i in range(8):
        k(f"s_movk_i32 s13, {i*1280}")
        for j in range(5):
            k(f"buffer_load_dword v{RAW+i*5+j}, v3, s[4:7], s13 offen offset:{j*256}")
    bp_addrs(k, BP, 1)
    k("s_mov_b32 s41, 0xffff0000")
    k("s_waitcnt vmcnt(0)")
    for i in range(8):
        for j in range(5):
            k(f"v_lshlrev_b32 v{VB+i*10+2*j}, 16, v{RAW+i*5+j}")
            k(f"v_and_b32 v{VB+i*10+2*j+1}, s41, v{RAW+i*5+j}")
    ln_core(k, VB, SUM, TMP, MEAN, RS, BP)
    k("v_lshlrev_b32 v5, 13, v1")
    k("v_lshl_add_u32 v5, v4, 1, v5")
    O = 184
    for j in range(5):
        for c in range(2):
            for ip in range(4):
                i0, i1 = 2 * ip, 2 * ip + 1
                norm_pair(k, O + 4 * c + ip, VB + i0 * 10 + 2 * j + c, MEAN + i0, RS + i0, VB + i1 * 10 + 2 * j + c, MEAN + i1, RS + i1, 6, 7)
        for ip in range(4):
            r0, r1 = RAW + 2 * ip * 5 + j, RAW + (2 * ip + 1) * 5 + j
            k(f"v_and_b32 v6, 0xffff, v{r0}")
            k(f"v_lshl_or_b32 v{O+8+ip}, v{r1}, 16, v6")
            k(f"v_lshrrev_b32 v6, 16, v{r0}")
            k(f"v_and_or_b32 v{O+12+ip}, v{r1}, s41, v6")
        k(f"s_mov_b32 s15, {WS_UT + j*524288}")
        k(f"buffer_store_dwordx4 v[{O}:{O+3}], v5, s[8:11], s15 offen")
        k(f"s_mov_b32 s15, {WS_UT + j*524288 + 4096}")
        k(f"buffer_store_dwordx4 v[{O+4}:{O+7}], v5, s[8:11], s15 offen")
        k(f"s_mov_b32 s15, {WS_XT + j*524288}")
        k(f"buffer_store_dwordx4 v[{O+8}:{O+11}], v5, s[8:11], s15 offen")
        k(f"s_mov_b32 s15, {WS_XT + j*524288 + 4096}")
        k(f"buffer_store_dwordx4 v[{O+12}:{O+15}], v5, s[8:11], s15 offen")
        k("s_nop 1")
    k("s_endpgm")


def role_transpose(k, tag, sreg, R, C, ws_dst, wg_reg):
    ntile_c = C // 64
    magic = (1 << 32) // ntile_c + 1
    k(f"s_mov_b32 s12, {magic}")
    k(f"s_mul_hi_u32 s13, s{wg_reg}, s12")
    k(f"s_mul_i32 s14, s13, {ntile_c}")
    k(f"s_sub_u32 s14, s{wg_reg}, s14")
    k("v_lshrrev_b32 v1, 2, v0")
    k("v_and_b32 v2, 3, v0")
    k("s_lshl_b32 s15, s13, 6")
    k("v_add_u32 v3, s15, v1")
    k(f"s_movk_i32 s16, {C*2}")
    k("v_mul_lo_u32 v3, v3, s16")
    k("s_lshl_b32 s17, s14, 7")
    k("v_lshl_add_u32 v4, v2, 5, s17")
    k("v_add_u32 v3, v3, v4")
    k(f"buffer_load_dwordx4 v[8:11], v3, s[{sreg}:{sreg+3}], 0 offen")
    k(f"buffer_load_dwordx4 v[12:15], v3, s[{sreg}:{sreg+3}], 0 offen offset:16")
    k("s_movk_i32 s18, 2080")
    k("v_mul_lo_u32 v5, v2, s18")
    k("v_lshl_add_u32 v5, v1, 1, v5")
    k("s_waitcnt vmcnt(0)")
    for e in range(16):
        r = 8 + e // 2
        if e % 2 == 0:
            k(f"ds_write_b16 v5, v{r} offset:{e*130}")
        else:
            k(f"ds_write_b16_d16_hi v5, v{r} offset:{e*130}")
    k("s_waitcnt lgkmcnt(0)")
    k("s_barrier")
    k("s_movk_i32 s18, 130")
    k("v_mul_lo_u32 v5, v1, s18")
    k("v_lshl_add_u32 v5, v2, 5, v5")
    k("ds_read_b128 v[8:11], v5")
    k("ds_read_b128 v[12:15], v5 offset:16")
    k("s_lshl_b32 s15, s14, 6")
    k("v_add_u32 v3, s15, v1")
    k(f"s_movk_i32 s16, {R*2}")
    k("v_mul_lo_u32 v3, v3, s16")
    k("s_lshl_b32 s17, s13, 7")
    k("v_lshl_add_u32 v4, v2, 5, s17")
    k("v_add_u32 v3, v3, v4")
    k(f"s_mov_b32 s19, {ws_dst}")
    k("s_waitcnt lgkmcnt(0)")
    k("buffer_store_dwordx4 v[8:11], v3, s[8:11], s19 offen")
    k("buffer_store_dwordx4 v[12:15], v3, s[8:11], s19 offen offset:16")
    k("s_endpgm")


RSTR = 144
ARR = 32 * RSTR
WAVE_LDS = 4 * ARR
KG_LDS = 4 * WAVE_LDS


def role_kgen(k, ch_reg):
    k("v_and_b32 v1, 63, v0")
    k("v_lshrrev_b32 v2, 6, v0")
    k("v_and_b32 v3, 31, v1")
    k("v_lshrrev_b32 v4, 5, v1")
    k(f"s_lshl_b32 s12, s{ch_reg}, 8")
    k("v_lshl_add_u32 v5, v2, 5, v3")
    k("v_lshlrev_b32 v5, 1, v5")
    k("v_add_u32 v5, s12, v5")
    for idx, s in enumerate([20, 24, 28, 32]):
        k(f"buffer_load_ushort v{8+idx}, v5, s[{s}:{s+3}], 0 offen")
    k(f"s_lshl_b32 s12, s{ch_reg}, 1")
    k("v_mov_b32 v6, s12")
    k("buffer_load_ushort v12, v6, s[36:39], 0 offen")
    k(f"v_mul_u32_u24 v20, {WAVE_LDS}, v2")
    k("v_lshl_add_u32 v21, v3, 2, v20")
    k("v_cvt_f32_u32 v22, v4")
    k("s_mov_b32 s41, 0xffff0000")
    k("s_mov_b32 s42, 0x3fb8aa3b")
    k("s_waitcnt vmcnt(0)")
    for r in range(8, 13):
        k(f"v_lshlrev_b32 v{r}, 16, v{r}")
    k("v_mul_f32 v12, s42, v12")
    k("v_mul_f32 v8, s42, v8")
    k("v_exp_f32 v12, v12")
    k("v_exp_f32 v8, v8")
    k("s_nop 0")
    k("v_cvt_pk_bf16_f32 v12, v12, v8")
    k("v_and_b32 v8, s41, v12")
    k("v_lshlrev_b32 v12, 16, v12")
    k("v_mul_f32 v8, v8, v12")
    k("v_mul_f32 v8, s42, v8")
    k("v_sub_f32 v8, 0, v8")
    k("v_mul_f32 v9, v9, v12")
    k("v_mul_f32 v9, 0x3e22f983, v9")
    k("v_mul_f32 v10, v10, v12")
    k("v_mul_f32 v11, v11, v12")
    k("v_add_f32 v10, v10, v10")
    k("v_add_f32 v11, v11, v11")
    k("v_cmp_eq_u32 vcc, 0, v4")
    k("v_sub_f32 v13, 0, v11")
    k("v_sub_f32 v14, 0, v10")
    k("v_cndmask_b32 v24, 1.0, v10, vcc")
    k("v_cndmask_b32 v25, 0, v13, vcc")
    k("v_cndmask_b32 v26, 1.0, v14, vcc")
    k("v_cndmask_b32 v27, 0, v13, vcc")
    for t in range(27):
        p0 = HI[t] if t < 21 else 8 * (t - 21)
        p1 = 8 * (6 + t) if t < 26 else 8 * 31
        row0 = (0 * ARR + t * RSTR) if t < 21 else (2 * ARR + (t - 21) * RSTR)
        row1 = 2 * ARR + min(6 + t, 31) * RSTR
        k(f"v_mov_b32 v30, {fbits(p0)}")
        k(f"v_fmamk_f32 v30, v22, {fbits(p1 - p0)}, v30")
        k("v_mul_f32 v31, v8, v30")
        k("v_mul_f32 v32, v9, v30")
        k("v_exp_f32 v31, v31")
        k("v_fract_f32 v32, v32")
        k(f"s_movk_i32 s43, {row1 - row0}")
        k("v_cos_f32 v33, v32")
        k("v_sin_f32 v34, v32")
        k("v_mad_i32_i24 v35, v4, s43, v21")
        if t < 21:
            k("v_mul_f32 v36, v24, v33")
            k("v_mul_f32 v37, v26, v34")
            k("v_fmac_f32 v36, v25, v34")
            k("v_fmac_f32 v37, v27, v33")
            k("v_mul_f32 v36, v36, v31")
            k("v_mul_f32 v37, v37, v31")
        else:
            k("v_mul_f32 v36, v33, v31")
            k("v_mul_f32 v37, v34, v31")
        k("v_cvt_pk_bf16_f32 v38, v36, v37")
        k("v_lshlrev_b32 v39, 16, v38")
        k("v_and_b32 v40, s41, v38")
        k("v_sub_f32 v36, v36, v39")
        k("v_sub_f32 v37, v37, v40")
        k("v_cvt_pk_bf16_f32 v39, v36, v37")
        k(f"ds_write_b32 v35, v38 offset:{row0}")
        k(f"ds_write_b32 v35, v39 offset:{row0 + ARR}")
    ACC = 64
    for r in range(16):
        k(f"v_mov_b32 v{ACC+r}, 0")
    k(f"v_mul_u32_u24 v41, {RSTR}, v3")
    k("v_lshl_add_u32 v41, v4, 4, v41")
    k("v_add_u32 v41, v41, v20")
    k("s_waitcnt lgkmcnt(0)")
    for s in range(4):
        b = 80 + 16 * s
        for a in range(4):
            k(f"ds_read_b128 v[{b+4*a}:{b+4*a+3}], v41 offset:{a*ARR + s*32}")
    for s in range(4):
        b = 80 + 16 * s
        k(f"s_waitcnt lgkmcnt({12 - 4*s})")
        k(f"v_mfma_f32_32x32x16_bf16 v[{ACC}:{ACC+15}], v[{b}:{b+3}], v[{b+8}:{b+11}], v[{ACC}:{ACC+15}]")
        k(f"v_mfma_f32_32x32x16_bf16 v[{ACC}:{ACC+15}], v[{b}:{b+3}], v[{b+12}:{b+15}], v[{ACC}:{ACC+15}]")
        k(f"v_mfma_f32_32x32x16_bf16 v[{ACC}:{ACC+15}], v[{b+4}:{b+7}], v[{b+8}:{b+11}], v[{ACC}:{ACC+15}]")
    k("v_lshlrev_b32 v42, 9, v4")
    k("v_lshl_add_u32 v42, v3, 2, v42")
    k("v_add_u32 v42, v42, v20")
    k("s_nop 7")
    k("s_nop 3")
    for r in range(16):
        row0 = 8 * (r >> 2) + (r & 3)
        if row0 < 21:
            k(f"ds_write_b32 v42, v{ACC+r} offset:{row0*128}")
    k("s_waitcnt lgkmcnt(0)")
    k("s_barrier")
    TB = 3 * WAVE_LDS + 4096
    for it in range(3):
        k(f"v_add_u32 v43, {it*256}, v0")
        k("v_lshlrev_b32 v44, 2, v43")
        for w in range(4):
            k(f"ds_read_b32 v{45+w}, v44 offset:{w*WAVE_LDS}")
        k("v_lshrrev_b32 v50, 5, v43")
        k("v_and_b32 v51, 31, v43")
        k("v_mov_b32 v52, v50")
        k("v_subrev_u32 v53, 8, v50")
        k("v_lshlrev_b32 v53, 1, v53")
        k("v_add_u32 v53, 0x100, v53")
        k("v_cmp_le_u32 vcc, 8, v50")
        k("v_subrev_u32 v54, 12, v50")
        k("v_and_b32 v55, 1, v54")
        k("v_cndmask_b32 v52, v52, v53, vcc")
        k("v_lshlrev_b32 v55, 2, v55")
        k("v_lshrrev_b32 v54, 1, v54")
        k("v_lshl_add_u32 v54, v54, 8, v55")
        k("v_add_u32 v54, 0x200, v54")
        k("v_cmp_le_u32 vcc, 12, v50")
        k("v_subrev_u32 v53, 16, v50")
        k("v_lshlrev_b32 v53, 8, v53")
        k("v_cndmask_b32 v52, v52, v54, vcc")
        k("v_add_u32 v53, 0x400, v53")
        k("v_cmp_le_u32 vcc, 16, v50")
        k("s_nop 1")
        k("v_cndmask_b32 v52, v52, v53, vcc")
        k("v_lshl_add_u32 v52, v51, 3, v52")
        k("v_min_u32 v52, 0x801, v52")
        k("v_cmp_gt_u32 vcc, 0x2a0, v43")
        k("v_mov_b32 v53, 0x801")
        k("s_nop 0")
        k("v_cndmask_b32 v52, v53, v52, vcc")
        k("v_lshlrev_b32 v52, 2, v52")
        k("s_waitcnt lgkmcnt(0)")
        k("v_add_f32 v45, v45, v46")
        k("v_add_f32 v47, v47, v48")
        k("v_add_f32 v45, v45, v47")
        k(f"ds_write_b32 v52, v45 offset:{TB}")
    k("s_waitcnt lgkmcnt(0)")
    k("s_barrier")
    k("v_lshlrev_b32 v43, 3, v0")
    k("v_sub_u32 v43, 0x7ff, v43")
    for e in range(8):
        k(f"v_subrev_u32 v44, {e}, v43")
        k("v_cvt_f32_u32 v44, v44")
        k("v_cvt_pk_bf16_f32 v44, v44, v44")
        k("v_lshlrev_b32 v44, 16, v44")
        k("v_cvt_u32_f32 v44, v44")
        k("v_lshlrev_b32 v44, 2, v44")
        k(f"ds_read_b32 v{48+e}, v44 offset:{TB}")
    k(f"s_lshl_b32 s12, s{ch_reg}, 12")
    k(f"s_add_u32 s12, s12, {WS_KB}")
    k("v_lshlrev_b32 v44, 4, v0")
    k("s_waitcnt lgkmcnt(0)")
    for e in range(4):
        k(f"v_cvt_pk_bf16_f32 v{56+e}, v{48+2*e}, v{49+2*e}")
    k("buffer_store_dwordx4 v[56:59], v44, s[8:11], s12 offen")
    k("s_endpgm")


def gen_prep(name):
    k = K(name, 200)
    NKG, NLN, NT = 640, 64, 270
    total = NKG + NLN + 3 * NT
    k(f"s_cmp_ge_u32 s2, {total}")
    k(f"s_cbranch_scc1 {k.L('end')}")
    t = [srd(k, 4, KARG['u'], L * D * 2), srd(k, 8, KARG['ws'], WS_SIZE),
         srd(k, 20, KARG['logA'], D * N * 2), srd(k, 24, KARG['Aim'], D * N * 2), srd(k, 28, KARG['Cr'], D * N * 2),
         srd(k, 32, KARG['Ci'], D * N * 2), srd(k, 36, KARG['logdt'], D * 2),
         srd(k, 44, KARG['wg'], D * F * 2), srd(k, 48, KARG['wu'], D * F * 2), srd(k, 52, KARG['wd'], D * F * 2)]
    k("s_waitcnt lgkmcnt(0)")
    for x in t:
        srd_fin(k, x)
    k(f"s_cmp_lt_u32 s2, {NLN}")
    k(f"s_cbranch_scc1 {k.L('ln1')}")
    k(f"s_sub_u32 s56, s2, {NLN}")
    k(f"s_cmp_lt_u32 s56, {NKG}")
    k(f"s_cbranch_scc1 {k.L('kgen')}")
    k(f"s_sub_u32 s56, s56, {NKG}")
    k(f"s_cmp_lt_u32 s56, {NT}")
    k(f"s_cbranch_scc1 {k.L('tg')}")
    k(f"s_sub_u32 s56, s56, {NT}")
    k(f"s_cmp_lt_u32 s56, {NT}")
    k(f"s_cbranch_scc1 {k.L('tu')}")
    k(f"s_sub_u32 s56, s56, {NT}")
    role_transpose(k, "d", 52, 1728, 640, WS_WDT, 56)
    k.label("tg")
    role_transpose(k, "g", 44, 640, 1728, WS_WGT, 56)
    k.label("tu")
    role_transpose(k, "u", 48, 640, 1728, WS_WUT, 56)
    k.label("kgen")
    role_kgen(k, 56)
    k.label("ln1")
    role_ln1(k)
    k.label("end")
    k("s_endpgm")
    return k, KG_LDS, total


def gen_ln2(name):
    k = K(name, 200)
    k("s_cmp_ge_u32 s2, 64")
    k(f"s_cbranch_scc1 {k.L('end')}")
    t = [srd(k, 8, KARG['ws'], WS_SIZE)]
    k("v_and_b32 v1, 63, v0")
    k("v_lshrrev_b32 v2, 6, v0")
    k("s_lshl_b32 s3, s2, 5")
    k("v_lshlrev_b32 v4, 3, v2")
    k("v_add_u32 v4, s3, v4")
    k("v_lshlrev_b32 v5, 13, v1")
    k("v_lshl_add_u32 v5, v4, 1, v5")
    k("s_waitcnt lgkmcnt(0)")
    for x in t:
        srd_fin(k, x)
    RAW = 144
    for j in range(5):
        for c in range(2):
            k(f"s_mov_b32 s15, {WS_HT + j*524288 + c*4096}")
            r = RAW + (j * 2 + c) * 4
            k(f"buffer_load_dwordx4 v[{r}:{r+3}], v5, s[8:11], s15 offen")
    bp_addrs(k, BP, 1)
    k("s_movk_i32 s12, 1280")
    k("v_mul_lo_u32 v3, v4, s12")
    k("v_lshl_add_u32 v3, v1, 2, v3")
    k("s_mov_b32 s41, 0xffff0000")
    k("s_waitcnt vmcnt(0)")
    for j in range(5):
        for c in range(2):
            r = RAW + (j * 2 + c) * 4
            for ip in range(4):
                k(f"v_lshlrev_b32 v{VB+(2*ip)*10+2*j+c}, 16, v{r+ip}")
                k(f"v_and_b32 v{VB+(2*ip+1)*10+2*j+c}, s41, v{r+ip}")
    ln_core(k, VB, SUM, TMP, MEAN, RS, BP)
    for i in range(8):
        k(f"s_mov_b32 s15, {WS_HL + i*1280}")
        k(f"s_mov_b32 s16, {WS_H + i*1280}")
        for j in range(5):
            a, b = VB + i * 10 + 2 * j, VB + i * 10 + 2 * j + 1
            o = 184 + (i * 5 + j) % 8
            norm_pair(k, o, a, MEAN + i, RS + i, b, MEAN + i, RS + i, 6, 7)
            k(f"buffer_store_dword v{o}, v3, s[8:11], s15 offen offset:{j*256}")
            o2 = 192 + (i * 5 + j) % 8
            k(f"v_cvt_pk_bf16_f32 v{o2}, v{a}, v{b}")
            k(f"buffer_store_dword v{o2}, v3, s[8:11], s16 offen offset:{j*256}")
    k.label("end")
    k("s_endpgm")
    return k
```

```python
pats = {
 0: ["v_lshlrev_b32 v4, 4, v2"],
 1: ["v_and_b32 v8, 31, v2","v_lshrrev_b32 v9, 5, v2","v_lshlrev_b32 v4, 4, v9","v_lshlrev_b32 v8, 1, v8","v_sub_u32 v4, v4, v8","v_add_u32 v4, 64, v4"],
 2: ["v_and_b32 v8, 31, v2","v_lshrrev_b32 v9, 5, v2","v_lshlrev_b32 v4, 4, v9","v_lshlrev_b32 v8, 2, v8","v_sub_u32 v4, v4, v8","v_add_u32 v4, 128, v4"],
 3: ["v_and_b32 v8, 31, v2","v_lshrrev_b32 v9, 5, v2","v_lshlrev_b32 v4, 4, v9","v_lshl_add_u32 v4, v8, 6, v4"],
 4: ["v_and_b32 v8, 31, v2","v_lshrrev_b32 v9, 5, v2","v_lshlrev_b32 v4, 4, v9","v_lshlrev_b32 v8, 3, v8","v_sub_u32 v4, v4, v8","v_add_u32 v4, 256, v4"],
 5: ["v_and_b32 v8, 31, v2","v_lshrrev_b32 v9, 5, v2","v_mul_u32_u24 v4, 80, v8","v_lshl_add_u32 v4, v9, 4, v4"],
}
s = '''.amdgcn_target "amdgcn-amd-amdhsa--gfx950"
.text
.globl t_kernel
.p2align 8
.type t_kernel,@function
t_kernel:
    s_load_dwordx2 s[4:5], s[0:1], 0
    v_and_b32 v2, 63, v0
    v_lshrrev_b32 v3, 6, v0
    s_waitcnt lgkmcnt(0)
    s_mov_b32 s6, 0x10000
    s_mov_b32 s7, 0x00020000
'''
for p, code in pats.items():
    s += "\n".join("    "+c for c in code) + "\n"
    s += f'''    s_barrier
    s_memtime s[10:11]
    s_waitcnt lgkmcnt(0)
    s_mov_b32 s8, 0
L{p}:
'''
    for i in range(8):
        s += f"    ds_read_b128 v[{16+4*i}:{19+4*i}], v4 offset:{i*4096}\n"
    s += f'''    s_waitcnt lgkmcnt(4)
    s_add_u32 s8, s8, 1
    s_cmp_lt_u32 s8, 128
    s_cbranch_scc1 L{p}
    s_waitcnt lgkmcnt(0)
    s_memtime s[12:13]
    s_waitcnt lgkmcnt(0)
    s_sub_u32 s12, s12, s10
    v_mov_b32 v5, s12
    v_lshlrev_b32 v6, 5, v3
    v_add_u32 v6, {p*4}, v6
    buffer_store_dword v5, v6, s[4:7], 0 offen
'''
s += '''    s_endpgm
.section .rodata,"a"
.p2align 6
.amdhsa_kernel t_kernel
  .amdhsa_next_free_vgpr 64
  .amdhsa_next_free_sgpr 32
  .amdhsa_accum_offset 64
  .amdhsa_group_segment_fixed_size 65536
  .amdhsa_kernarg_size 8
  .amdhsa_user_sgpr_count 2
  .amdhsa_user_sgpr_kernarg_segment_ptr 1
  .amdhsa_system_sgpr_workgroup_id_x 1
.end_amdhsa_kernel
.amdgpu_metadata
---
amdhsa.version: [1, 2]
amdhsa.kernels:
  - .name: t_kernel
    .symbol: t_kernel.kd
    .kernarg_segment_size: 8
    .kernarg_segment_align: 8
    .group_segment_fixed_size: 65536
    .private_segment_fixed_size: 0
    .wavefront_size: 64
    .sgpr_count: 32
    .vgpr_count: 64
    .max_flat_workgroup_size: 256
    .args:
      - {.name: o, .size: 8, .offset: 0, .value_kind: global_buffer, .address_space: global}
...
.end_amdgpu_metadata
'''
open("t.s","w").write(s)
```

```python
import sys

OUT = "sequential_preLN__ssm_conv_s4d__glu_gated_geglu__prompt.s"

L, D, N, F = 2048, 640, 128, 1728

WS_UT = 0x0000000
WS_XT = 0x0300000
WS_K = 0x0600000
WS_H = 0x0C00000
WS_HL = 0x0F00000
WS_WGT = 0x1200000
WS_WUT = 0x1500000
WS_WDT = 0x1800000
WS_HA = 0x1B00000
WS_SIZE = 0x10000000
WS_KB = 0x2300000
WS_S1 = 0x2b00000
WS_ST = 0x2a00000
WS_CS = 0x2900000
WS_HT = 0x2600000

KARG = dict(u=0, logA=8, Aim=16, Cr=24, Ci=32, logdt=40, dskip=48, bx=56, wg=64, wu=72, wd=80, out=88, dbg=96, ws=104)


class K:
    def __init__(self, name, vgpr, sgpr=102, accum=None):
        self.name = name
        self.lines = []
        self.vgpr = vgpr
        self.sgpr = sgpr
        self.accum = accum if accum is not None else ((vgpr + 3) // 4) * 4

    def __call__(self, s):
        for ln in s.strip("\n").split("\n"):
            ln = ln.strip()
            if ln.startswith("buffer_"):
                import re as _re
                m = _re.search(r"offset:(\d+)", ln)
                assert not m or int(m.group(1)) < 4096, ln
            if ln.startswith("ds_"):
                import re as _re
                m = _re.search(r"offset:(\d+)", ln)
                assert not m or int(m.group(1)) < 65536, ln
            self.lines.append("    " + ln)

    def label(self, s):
        self.lines.append(f"{self.name}_{s}:")

    def L(self, s):
        return f"{self.name}_{s}"

    def text(self):
        t = [f".globl {self.name}", ".p2align 8", f".type {self.name},@function", f"{self.name}:"]
        t += self.lines
        return "\n".join(t) + "\n"

    def desc(self):
        return f""".amdhsa_kernel {self.name}
  .amdhsa_next_free_vgpr {self.vgpr}
  .amdhsa_next_free_sgpr {self.sgpr}
  .amdhsa_accum_offset {self.accum}
  .amdhsa_group_segment_fixed_size 0
  .amdhsa_kernarg_size 112
  .amdhsa_user_sgpr_count 2
  .amdhsa_user_sgpr_kernarg_segment_ptr 1
  .amdhsa_system_sgpr_workgroup_id_x 1
.end_amdhsa_kernel
"""


def srd(k, sreg, karg_off, nbytes, base_add=0):
    k(f"s_load_dwordx2 s[{sreg}:{sreg+1}], s[0:1], {karg_off}")
    return (sreg, nbytes, base_add)


def srd_fin(k, t):
    sreg, nbytes, base_add = t
    if base_add:
        k(f"s_add_u32 s{sreg}, s{sreg}, {base_add}")
        k(f"s_addc_u32 s{sreg+1}, s{sreg+1}, 0")
    k(f"s_and_b32 s{sreg+1}, s{sreg+1}, 0xffff")
    k(f"s_mov_b32 s{sreg+2}, {nbytes}")
    k(f"s_mov_b32 s{sreg+3}, 0x00020000")


def gen_ln(name, first):
    k = K(name, 128)
    k("s_cmp_ge_u32 s2, 64")
    k(f"s_cbranch_scc1 {k.L('end')}")
    if first:
        a = srd(k, 4, KARG['u'], L * D * 2)
    else:
        a = srd(k, 4, KARG['ws'], L * D * 2, WS_H)
    b = srd(k, 8, KARG['ws'], WS_SIZE)
    k("s_waitcnt lgkmcnt(0)")
    srd_fin(k, a)
    srd_fin(k, b)
    k("v_and_b32 v1, 63, v0")
    k("v_lshrrev_b32 v2, 6, v0")
    k("s_lshl_b32 s3, s2, 5")
    k("v_lshlrev_b32 v3, 3, v2")
    k("v_add_u32 v3, s3, v3")
    k("v_mov_b32 v4, v3")
    k("s_movk_i32 s12, 1280")
    k("v_mul_lo_u32 v3, v3, s12")
    k("v_lshl_add_u32 v3, v1, 2, v3")
    for i in range(8):
        k(f"s_movk_i32 s{16+i}, {i*1280}")
    RAW = 16
    for i in range(8):
        for j in range(5):
            k(f"buffer_load_dword v{RAW+i*5+j}, v3, s[4:7], s{16+i} offen offset:{j*256}")
    for h, m in enumerate([1, 2, 4, 8, 16, 32]):
        k(f"v_xor_b32 v{6+h}, {m}, v1")
        k(f"v_lshlrev_b32 v{6+h}, 2, v{6+h}")
    k("s_waitcnt vmcnt(0)")
    SUM = 56
    TMP = 64
    MEAN = 72
    RS = 80
    k("s_mov_b32 s13, 0xffff0000")
    for i in range(8):
        k(f"v_mov_b32 v{SUM+i}, 0")
        for j in range(5):
            r = RAW + i * 5 + j
            k(f"v_lshlrev_b32 v12, 16, v{r}")
            k(f"v_and_b32 v13, s13, v{r}")
            k(f"v_add_f32 v{SUM+i}, v{SUM+i}, v12")
            k(f"v_add_f32 v{SUM+i}, v{SUM+i}, v13")

    def reduce8():
        for h in range(6):
            for i in range(8):
                k(f"ds_bpermute_b32 v{TMP+i}, v{6+h}, v{SUM+i}")
            k("s_waitcnt lgkmcnt(0)")
            for i in range(8):
                k(f"v_add_f32 v{SUM+i}, v{SUM+i}, v{TMP+i}")
    reduce8()
    k(f"v_mov_b32 v14, 0x3acccccd")
    for i in range(8):
        k(f"v_mul_f32 v{MEAN+i}, v{SUM+i}, v14")
    for i in range(8):
        k(f"v_mov_b32 v{SUM+i}, 0")
        for j in range(5):
            r = RAW + i * 5 + j
            k(f"v_lshlrev_b32 v12, 16, v{r}")
            k(f"v_and_b32 v13, s13, v{r}")
            k(f"v_sub_f32 v12, v12, v{MEAN+i}")
            k(f"v_sub_f32 v13, v13, v{MEAN+i}")
            k(f"v_fmac_f32 v{SUM+i}, v12, v12")
            k(f"v_fmac_f32 v{SUM+i}, v13, v13")
    reduce8()
    k("v_mov_b32 v15, 0x3727c5ac")
    for i in range(8):
        k(f"v_mul_f32 v12, v{SUM+i}, v14")
        k(f"v_cvt_pk_bf16_f32 v12, v12, v{MEAN+i}")
        k(f"v_and_b32 v{MEAN+i}, s13, v12")
        k(f"v_lshlrev_b32 v12, 16, v12")
        k(f"v_add_f32 v12, v12, v15")
        k(f"v_cvt_pk_bf16_f32 v12, v12, v12")
        k(f"v_lshlrev_b32 v12, 16, v12")
        k(f"v_sqrt_f32 v12, v12")
        k("s_nop 1")
        k(f"v_cvt_pk_bf16_f32 v12, v12, v12")
        k(f"v_lshlrev_b32 v12, 16, v12")
        k(f"v_rcp_f32 v{RS+i}, v12")
    k("s_nop 1")
    OUTA = 88
    if first:
        k("v_lshlrev_b32 v5, 13, v1")
        k("v_lshl_add_u32 v5, v4, 1, v5")
        k(f"s_mov_b32 s14, {WS_XT}")
        for j in range(5):
            for ip in range(4):
                i0, i1 = 2 * ip, 2 * ip + 1
                r0, r1 = RAW + i0 * 5 + j, RAW + i1 * 5 + j
                k(f"v_lshlrev_b32 v12, 16, v{r0}")
                k(f"v_lshlrev_b32 v13, 16, v{r1}")
                k(f"v_sub_f32 v12, v12, v{MEAN+i0}")
                k(f"v_sub_f32 v13, v13, v{MEAN+i1}")
                k(f"v_cvt_pk_bf16_f32 v12, v12, v13")
                k(f"v_and_b32 v13, s13, v12")
                k(f"v_lshlrev_b32 v12, 16, v12")
                k(f"v_mul_f32 v12, v12, v{RS+i0}")
                k(f"v_mul_f32 v13, v13, v{RS+i1}")
                k(f"v_cvt_pk_bf16_f32 v{OUTA+ip}, v12, v13")
                k(f"v_and_b32 v12, s13, v{r0}")
                k(f"v_and_b32 v13, s13, v{r1}")
                k(f"v_sub_f32 v12, v12, v{MEAN+i0}")
                k(f"v_sub_f32 v13, v13, v{MEAN+i1}")
                k(f"v_cvt_pk_bf16_f32 v12, v12, v13")
                k(f"v_and_b32 v13, s13, v12")
                k(f"v_lshlrev_b32 v12, 16, v12")
                k(f"v_mul_f32 v12, v12, v{RS+i0}")
                k(f"v_mul_f32 v13, v13, v{RS+i1}")
                k(f"v_cvt_pk_bf16_f32 v{OUTA+4+ip}, v12, v13")
                k(f"v_and_b32 v12, 0xffff, v{r0}")
                k(f"v_lshl_or_b32 v{OUTA+8+ip}, v{r1}, 16, v12")
                k(f"v_lshrrev_b32 v12, 16, v{r0}")
                k(f"v_and_or_b32 v{OUTA+12+ip}, v{r1}, s13, v12")
            k(f"s_mov_b32 s15, {WS_UT + j*524288}")
            k(f"buffer_store_dwordx4 v[{OUTA}:{OUTA+3}], v5, s[8:11], s15 offen")
            k(f"s_mov_b32 s15, {WS_UT + j*524288 + 4096}")
            k(f"buffer_store_dwordx4 v[{OUTA+4}:{OUTA+7}], v5, s[8:11], s15 offen")
            k(f"s_mov_b32 s15, {WS_XT + j*524288}")
            k(f"buffer_store_dwordx4 v[{OUTA+8}:{OUTA+11}], v5, s[8:11], s15 offen")
            k(f"s_mov_b32 s15, {WS_XT + j*524288 + 4096}")
            k(f"buffer_store_dwordx4 v[{OUTA+12}:{OUTA+15}], v5, s[8:11], s15 offen")
            k("s_nop 1")
    else:
        for i in range(8):
            for j in range(5):
                r = RAW + i * 5 + j
                k(f"v_lshlrev_b32 v12, 16, v{r}")
                k(f"v_and_b32 v13, s13, v{r}")
                k(f"v_sub_f32 v12, v12, v{MEAN+i}")
                k(f"v_sub_f32 v13, v13, v{MEAN+i}")
                k(f"v_cvt_pk_bf16_f32 v12, v12, v13")
                k(f"v_and_b32 v13, s13, v12")
                k(f"v_lshlrev_b32 v12, 16, v12")
                k(f"v_mul_f32 v12, v12, v{RS+i}")
                k(f"v_mul_f32 v13, v13, v{RS+i}")
                k(f"v_cvt_pk_bf16_f32 v{r}, v12, v13")
            k(f"s_add_u32 s15, s{16+i}, {WS_HL}")
            for j in range(5):
                r = RAW + i * 5 + j
                k(f"buffer_store_dword v{r}, v3, s[8:11], s15 offen offset:{j*256}")
    k.label("end")
    k("s_endpgm")
    return k


def gen_transpose(name, karg_src, R, C, ws_dst):
    k = K(name, 64)
    ntile_c = C // 64
    nt = (R // 64) * ntile_c
    k(f"s_cmp_ge_u32 s2, {nt}")
    k(f"s_cbranch_scc1 {k.L('end')}")
    a = srd(k, 4, karg_src, R * C * 2)
    b = srd(k, 8, KARG['ws'], R * C * 2, ws_dst)
    k("s_waitcnt lgkmcnt(0)")
    srd_fin(k, a)
    srd_fin(k, b)
    magic = (1 << 32) // ntile_c + 1
    k(f"s_mov_b32 s12, {magic}")
    k("s_mul_hi_u32 s13, s2, s12")
    k(f"s_mul_i32 s14, s13, {ntile_c}")
    k("s_sub_u32 s14, s2, s14")
    k("v_lshrrev_b32 v1, 2, v0")
    k("v_and_b32 v2, 3, v0")
    k("s_lshl_b32 s15, s13, 6")
    k("v_add_u32 v3, s15, v1")
    k(f"s_movk_i32 s16, {C*2}")
    k("v_mul_lo_u32 v3, v3, s16")
    k("s_lshl_b32 s17, s14, 7")
    k("v_lshl_add_u32 v4, v2, 5, s17")
    k("v_add_u32 v3, v3, v4")
    k("buffer_load_dwordx4 v[8:11], v3, s[4:7], 0 offen")
    k("buffer_load_dwordx4 v[12:15], v3, s[4:7], 0 offen offset:16")
    k("s_movk_i32 s18, 2080")
    k("v_mul_lo_u32 v5, v2, s18")
    k("v_lshl_add_u32 v5, v1, 1, v5")
    k("s_waitcnt vmcnt(0)")
    for e in range(16):
        r = 8 + e // 2
        if e % 2 == 0:
            k(f"ds_write_b16 v5, v{r} offset:{e*130}")
        else:
            k(f"ds_write_b16_d16_hi v5, v{r} offset:{e*130}")
    k("s_waitcnt lgkmcnt(0)")
    k("s_barrier")
    k("s_movk_i32 s18, 130")
    k("v_mul_lo_u32 v5, v1, s18")
    k("v_lshl_add_u32 v5, v2, 5, v5")
    k("ds_read_b128 v[8:11], v5")
    k("ds_read_b128 v[12:15], v5 offset:16")
    k("s_lshl_b32 s15, s14, 6")
    k("v_add_u32 v3, s15, v1")
    k(f"s_movk_i32 s16, {R*2}")
    k("v_mul_lo_u32 v3, v3, s16")
    k("s_lshl_b32 s17, s13, 7")
    k("v_lshl_add_u32 v4, v2, 5, s17")
    k("v_add_u32 v3, v3, v4")
    k("s_waitcnt lgkmcnt(0)")
    k("buffer_store_dwordx4 v[8:11], v3, s[8:11], 0 offen")
    k("buffer_store_dwordx4 v[12:15], v3, s[8:11], 0 offen offset:16")
    k.label("end")
    k("s_endpgm")
    return k


def gen_kgen(name):
    k = K(name, 96)
    k("s_cmp_ge_u32 s2, 160")
    k(f"s_cbranch_scc1 {k.L('end')}")
    t = [srd(k, 4, KARG['logA'], D * N * 2), srd(k, 8, KARG['Aim'], D * N * 2), srd(k, 12, KARG['Cr'], D * N * 2),
         srd(k, 16, KARG['Ci'], D * N * 2), srd(k, 20, KARG['logdt'], D * 2), srd(k, 24, KARG['ws'], WS_SIZE)]
    k("s_waitcnt lgkmcnt(0)")
    for x in t:
        srd_fin(k, x)
    k("v_and_b32 v1, 63, v0")
    k("v_lshrrev_b32 v2, 6, v0")
    k("s_lshl_b32 s3, s2, 2")
    k("v_add_u32 v3, s3, v2")
    k("v_lshlrev_b32 v4, 8, v3")
    k("v_lshl_add_u32 v4, v1, 1, v4")
    for idx, s in enumerate([4, 8, 12, 16]):
        k(f"buffer_load_ushort v{8+2*idx}, v4, s[{s}:{s+3}], 0 offen")
        k(f"buffer_load_ushort v{9+2*idx}, v4, s[{s}:{s+3}], 0 offen offset:128")
    k("v_lshlrev_b32 v5, 1, v3")
    k("buffer_load_ushort v16, v5, s[20:23], 0 offen")
    k("s_waitcnt vmcnt(0)")
    for r in range(8, 17):
        k(f"v_lshlrev_b32 v{r}, 16, v{r}")
    k("v_mov_b32 v17, 0x3fb8aa3b")
    k("v_mul_f32 v16, v16, v17")
    k("v_exp_f32 v16, v16")
    k("v_mul_f32 v8, v8, v17")
    k("v_mul_f32 v9, v9, v17")
    k("v_exp_f32 v8, v8")
    k("v_exp_f32 v9, v9")
    k("s_nop 1")
    k("v_cvt_pk_bf16_f32 v16, v16, v16")
    k("v_lshlrev_b32 v16, 16, v16")
    k("v_cvt_pk_bf16_f32 v8, v8, v9")
    k("s_mov_b32 s28, 0xffff0000")
    k("v_and_b32 v9, s28, v8")
    k("v_lshlrev_b32 v8, 16, v8")
    k("v_mul_f32 v8, v8, v16")
    k("v_mul_f32 v9, v9, v16")
    k("v_mul_f32 v8, v8, v17")
    k("v_mul_f32 v9, v9, v17")
    k("v_sub_f32 v8, 0, v8")
    k("v_sub_f32 v9, 0, v9")
    k("v_mov_b32 v18, 0x3e22f983")
    k("v_mul_f32 v10, v10, v16")
    k("v_mul_f32 v11, v11, v16")
    k("v_mul_f32 v10, v10, v18")
    k("v_mul_f32 v11, v11, v18")
    for r in (12, 13, 14, 15):
        k(f"v_mul_f32 v{r}, v{r}, v16")
        k(f"v_add_f32 v{r}, v{r}, v{r}")
    k("v_and_b32 v20, 31, v1")
    k("v_lshlrev_b32 v21, 3, v20")
    k("v_cvt_f32_u32 v21, v21")
    k("v_mov_b32 v22, v20")
    k("v_subrev_u32 v23, 8, v20")
    k("v_lshl_add_u32 v23, v23, 1, 0x100") if False else None
    k("v_lshlrev_b32 v23, 1, v23")
    k("v_add_u32 v23, 0x100, v23")
    k("v_cmp_le_u32 vcc, 8, v20")
    k("s_nop 1")
    k("v_cndmask_b32 v22, v22, v23, vcc")
    k("v_subrev_u32 v23, 12, v20")
    k("v_and_b32 v24, 1, v23")
    k("v_lshlrev_b32 v24, 2, v24")
    k("v_lshrrev_b32 v23, 1, v23")
    k("v_lshl_add_u32 v23, v23, 8, v24")
    k("v_add_u32 v23, 0x200, v23")
    k("v_cmp_le_u32 vcc, 12, v20")
    k("s_nop 1")
    k("v_cndmask_b32 v22, v22, v23, vcc")
    k("v_subrev_u32 v23, 16, v20")
    k("v_lshlrev_b32 v23, 8, v23")
    k("v_add_u32 v23, 0x400, v23")
    k("v_cmp_le_u32 vcc, 16, v20")
    k("s_nop 1")
    k("v_cndmask_b32 v22, v22, v23, vcc")
    k("v_mov_b32 v23, 0x800")
    k("v_cmp_le_u32 vcc, 20, v20")
    k("s_nop 1")
    k("v_cndmask_b32 v22, v22, v23, vcc")
    k("v_mov_b32 v25, v22")
    k("v_cvt_f32_u32 v22, v22")
    k("v_cmp_le_u32 s[30:31], 32, v1")
    k("v_mov_b32 v26, 0")
    k("v_mov_b32 v27, 0xbe800000")
    k("s_nop 1")
    k("v_cndmask_b32 v26, v26, v27, s[30:31]")
    ACC = 32
    for r in range(16):
        k(f"v_mov_b32 v{ACC+r}, 0")
    for half in range(2):
        k("s_mov_b32 s32, 0")
        k.label(f"nl{half}")
        k(f"v_readlane_b32 s33, v{8+half}, s32")
        k(f"v_readlane_b32 s34, v{10+half}, s32")
        k(f"v_readlane_b32 s35, v{12+half}, s32")
        k(f"v_readlane_b32 s36, v{14+half}, s32")
        k("s_nop 3")
        k("v_mul_f32 v50, s33, v21")
        k("v_fma_f32 v51, s34, v21, v26")
        k("v_exp_f32 v50, v50")
        k("v_fract_f32 v51, v51")
        k("v_mul_f32 v52, s33, v22")
        k("v_mul_f32 v53, s34, v22")
        k("v_cos_f32 v51, v51")
        k("v_exp_f32 v52, v52")
        k("v_fract_f32 v53, v53")
        k("s_nop 0")
        k("v_cos_f32 v54, v53")
        k("v_sin_f32 v55, v53")
        k("v_mul_f32 v50, v50, v51")
        k("s_nop 0")
        k("v_mul_f32 v56, s35, v54")
        k("v_mul_f32 v57, s36, v55")
        k("v_sub_f32 v56, v56, v57")
        k("v_mul_f32 v57, s35, v55")
        k("v_mul_f32 v58, s36, v54")
        k("v_add_f32 v57, v57, v58")
        k("v_sub_f32 v57, 0, v57")
        k("v_cndmask_b32 v56, v56, v57, s[30:31]")
        k("v_mul_f32 v56, v56, v52")
        k("s_nop 1")
        k(f"v_mfma_f32_32x32x2_f32 v[{ACC}:{ACC+15}], v56, v50, v[{ACC}:{ACC+15}]")
        k("s_add_u32 s32, s32, 1")
        k("s_cmp_lt_u32 s32, 64")
        k(f"s_cbranch_scc1 {k.L(f'nl{half}')}")
    k("s_nop 15")
    k("s_nop 3")
    k("s_movk_i32 s37, 8448")
    k("s_movk_i32 s43, 0x800")
    k("v_mul_lo_u32 v59, v2, s37")
    k("v_lshrrev_b32 v60, 5, v1")
    k("v_lshlrev_b32 v60, 2, v60")
    for r in range(16):
        row0 = 8 * (r >> 2) + (r & 3)
        k(f"v_add_u32 v61, {row0}, v60")
        k("v_lshlrev_b32 v62, 2, v61")
        k("ds_bpermute_b32 v63, v62, v25")
        k("s_waitcnt lgkmcnt(0)")
        k("v_lshl_add_u32 v63, v20, 3, v63")
        k("v_cmp_gt_u32 vcc, 21, v61")
        k("v_cmp_ge_u32 s[38:39], s43, v63")
        k("s_and_b64 vcc, vcc, s[38:39]")
        k("v_lshl_add_u32 v63, v63, 2, v59")
        k("s_and_saveexec_b64 s[40:41], vcc")
        k(f"ds_write_b32 v63, v{ACC+r}")
        k("s_mov_b64 exec, s[40:41]")
    k("s_waitcnt lgkmcnt(0)")
    k("s_barrier")
    k("v_lshlrev_b32 v64, 13, v3")
    k("v_lshl_add_u32 v64, v1, 4, v64")
    k(f"s_mov_b32 s42, {WS_K}")
    k(f"s_mov_b32 s44, {WS_K+4096}")
    for it in range(8):
        for e in range(4):
            k(f"v_lshlrev_b32 v65, 2, v1")
            k(f"v_add_u32 v65, {it*256+e}, v65")
            k("v_cvt_f32_u32 v65, v65")
            k("v_cvt_pk_bf16_f32 v65, v65, v65")
            k("v_lshlrev_b32 v65, 16, v65")
            k("v_cvt_u32_f32 v65, v65")
            k("v_lshl_add_u32 v65, v65, 2, v59")
            k(f"ds_read_b32 v{68+e}, v65")
        k("s_waitcnt lgkmcnt(0)")
        k(f"buffer_store_dwordx4 v[68:71], v64, s[24:27], s{42 if it<4 else 44} offen offset:{(it%4)*1024}")
        k("s_nop 1")
    k.label("end")
    k("s_endpgm")
    return k


def gen_conv(name):
    WAVE_LDS = 8192 + 4224
    k = K(name, 128)
    k("s_cmp_ge_u32 s2, 160")
    k(f"s_cbranch_scc1 {k.L('end')}")
    t = [srd(k, 4, KARG['ws'], WS_SIZE), srd(k, 8, KARG['dskip'], D * 2)]
    k("s_waitcnt lgkmcnt(0)")
    for x in t:
        srd_fin(k, x)
    k("v_and_b32 v1, 63, v0")
    k("v_lshrrev_b32 v2, 6, v0")
    k("s_lshl_b32 s3, s2, 2")
    k("v_add_u32 v3, s3, v2")
    k(f"s_movk_i32 s12, {WAVE_LDS}")
    k("v_mul_lo_u32 v4, v2, s12")
    k("v_lshlrev_b32 v5, 12, v3")
    k("v_lshl_add_u32 v5, v1, 4, v5")
    k(f"s_mov_b32 s13, {WS_UT}")
    for it in range(4):
        k(f"buffer_load_dwordx4 v[{16+4*it}:{19+4*it}], v5, s[4:7], s13 offen offset:{it*1024}")
    k("v_lshlrev_b32 v6, 13, v3")
    k("v_lshl_add_u32 v6, v1, 4, v6")
    k(f"s_mov_b32 s14, {WS_K}")
    k(f"s_mov_b32 s15, {WS_K+4096}")
    for it in range(8):
        k(f"buffer_load_dwordx4 v[{32+4*it}:{35+4*it}], v6, s[4:7], s{14 if it<4 else 15} offen offset:{(it%4)*1024}")
    k("v_lshlrev_b32 v7, 1, v3")
    k("buffer_load_ushort v15, v7, s[8:11], 0 offen")
    k("v_mov_b32 v64, 0")
    k("v_mov_b32 v65, 0")
    k("v_mov_b32 v66, 0")
    k("v_mov_b32 v67, 0")
    k("v_lshl_add_u32 v8, v1, 4, v4")
    for it in range(4):
        k(f"ds_write_b128 v8, v[64:67] offset:{it*1024}")
    k("v_cmp_gt_u32 vcc, 8, v1")
    k("s_and_saveexec_b64 s[16:17], vcc")
    k(f"ds_write_b128 v8, v[64:67] offset:{8192+4096}")
    k("s_mov_b64 exec, s[16:17]")
    k("s_waitcnt vmcnt(0)")
    for it in range(4):
        k(f"ds_write_b128 v8, v[{16+4*it}:{19+4*it}] offset:{4096+it*1024}")
    k("v_lshlrev_b32 v9, 3, v1")
    k("v_sub_u32 v9, v4, v9")
    k(f"v_add_u32 v9, {8192+4088}, v9")
    for it in range(8):
        b = 32 + 4 * it
        k(f"v_cvt_pk_bf16_f32 v64, v{b+3}, v{b+2}")
        k(f"v_cvt_pk_bf16_f32 v65, v{b+1}, v{b}")
        k(f"v_subrev_u32 v10, {it*512}, v9")
        k("ds_write_b64 v10, v[64:65]")
        k("s_nop 0")
    k("v_lshlrev_b32 v15, 16, v15")
    k("s_waitcnt lgkmcnt(0)")
    k("s_barrier")
    k("v_and_b32 v11, 31, v1")
    k("v_lshrrev_b32 v12, 5, v1")
    k("v_lshlrev_b32 v13, 4, v12")
    k("v_lshlrev_b32 v14, 1, v11")
    k("v_sub_u32 v13, v13, v14")
    k(f"v_add_u32 v13, {8192+4094}, v13")
    k("v_add_u32 v13, v13, v4")
    k("v_lshlrev_b32 v14, 6, v11")
    k("v_lshl_add_u32 v14, v12, 4, v14")
    k("v_add_u32 v14, 4096, v14")
    k("v_add_u32 v14, v14, v4")
    k("v_mov_b32 v112, v14")
    ACC0, ACC1 = 64, 80
    for r in range(32):
        k(f"v_mov_b32 v{ACC0+r}, 0")
    k("s_mov_b32 s18, 0")
    k.label("p1")
    k("ds_read_b128 v[16:19], v13")
    k("ds_read_b128 v[20:23], v13 offset:32")
    k("ds_read_b128 v[24:27], v14")
    k("ds_read_b128 v[28:31], v14 offset:32")
    k("ds_read_b128 v[32:35], v14 offset:2048")
    k("ds_read_b128 v[36:39], v14 offset:2080")
    k("v_subrev_u32 v13, 64, v13")
    k("v_subrev_u32 v14, 64, v14")
    k("s_waitcnt lgkmcnt(0)")
    k(f"v_mfma_f32_32x32x16_bf16 v[{ACC0}:{ACC0+15}], v[16:19], v[24:27], v[{ACC0}:{ACC0+15}]")
    k(f"v_mfma_f32_32x32x16_bf16 v[{ACC1}:{ACC1+15}], v[16:19], v[32:35], v[{ACC1}:{ACC1+15}]")
    k(f"v_mfma_f32_32x32x16_bf16 v[{ACC0}:{ACC0+15}], v[20:23], v[28:31], v[{ACC0}:{ACC0+15}]")
    k(f"v_mfma_f32_32x32x16_bf16 v[{ACC1}:{ACC1+15}], v[20:23], v[36:39], v[{ACC1}:{ACC1+15}]")
    k("s_add_u32 s18, s18, 1")
    k("s_cmp_lt_u32 s18, 32")
    k(f"s_cbranch_scc1 {k.L('p1')}")
    k.label("p2")
    k("ds_read_b128 v[16:19], v13")
    k("ds_read_b128 v[20:23], v13 offset:32")
    k("ds_read_b128 v[32:35], v14 offset:2048")
    k("ds_read_b128 v[36:39], v14 offset:2080")
    k("v_subrev_u32 v13, 64, v13")
    k("v_subrev_u32 v14, 64, v14")
    k("s_waitcnt lgkmcnt(0)")
    k(f"v_mfma_f32_32x32x16_bf16 v[{ACC1}:{ACC1+15}], v[16:19], v[32:35], v[{ACC1}:{ACC1+15}]")
    k(f"v_mfma_f32_32x32x16_bf16 v[{ACC1}:{ACC1+15}], v[20:23], v[36:39], v[{ACC1}:{ACC1+15}]")
    k("s_add_u32 s18, s18, 1")
    k("s_cmp_lt_u32 s18, 64")
    k(f"s_cbranch_scc1 {k.L('p2')}")
    k("s_nop 15")
    k("s_mov_b32 s19, 0xffff0000")
    k(f"s_mov_b32 s20, {WS_XT}")
    k(f"s_mov_b32 s21, {WS_H}")
    k("s_movk_i32 s22, 1280")
    for cb in range(2):
        for rq in range(4):
            k("v_lshlrev_b32 v16, 5, v11")
            k(f"v_lshl_add_u32 v16, v12, 2, v16")
            k(f"v_add_u32 v16, {1024*cb+8*rq}, v16")
            k("v_lshl_add_u32 v17, v16, 1, v4")
            k("ds_read_b64 v[18:19], v17 offset:4096")
            k("v_lshlrev_b32 v20, 12, v3")
            k("v_lshl_add_u32 v20, v16, 1, v20")
            k("buffer_load_dwordx2 v[22:23], v20, s[4:7], s20 offen")
            k("v_mul_lo_u32 v21, v16, s22")
            k("v_lshl_add_u32 v21, v3, 1, v21")
            k("s_waitcnt vmcnt(0) lgkmcnt(0)")
            for e in range(4):
                acc = (ACC0 if cb == 0 else ACC1) + 4 * rq + e
                src_u = 18 + e // 2
                src_x = 22 + e // 2
                if e % 2 == 0:
                    k(f"v_lshlrev_b32 v24, 16, v{src_u}")
                    k(f"v_lshlrev_b32 v25, 16, v{src_x}")
                else:
                    k(f"v_and_b32 v24, s19, v{src_u}")
                    k(f"v_and_b32 v25, s19, v{src_x}")
                k("v_mul_f32 v24, v24, v15")
                k(f"v_cvt_pk_bf16_f32 v26, v24, v{acc}")
                k("v_and_b32 v27, s19, v26")
                k("v_lshlrev_b32 v26, 16, v26")
                k("v_add_f32 v26, v26, v27")
                k("v_cvt_pk_bf16_f32 v26, v26, v26")
                k("v_lshlrev_b32 v26, 16, v26")
                k("v_add_f32 v26, v26, v25")
                k("v_cvt_pk_bf16_f32 v26, v26, v26")
                k(f"buffer_store_short v26, v21, s[4:7], s21 offen offset:{e*1280}")
    k.label("end")
    k("s_endpgm")
    return k, 4 * WAVE_LDS


def gen_gemm(name, mode):
    Kdim = 640 if mode == 1 else 1728
    ntn = 27 if mode == 1 else 5
    nwg = 16 * ntn
    STR = 80
    TILE = 128 * STR
    k = K(name, 160)
    k(f"s_cmp_ge_u32 s2, {nwg}")
    k(f"s_cbranch_scc1 {k.L('end')}")
    t = [srd(k, 4, KARG['ws'], WS_SIZE), srd(k, 8, KARG['out'], L * D * 2)]
    k("s_waitcnt lgkmcnt(0)")
    for x in t:
        srd_fin(k, x)
    k("s_and_b32 s12, s2, 15")
    k("s_lshr_b32 s13, s2, 4")
    k("v_lshrrev_b32 v1, 1, v0")
    k("v_and_b32 v2, 1, v0")
    k("s_lshl_b32 s14, s12, 7")
    k("v_add_u32 v3, s14, v1")
    k(f"s_movk_i32 s15, {Kdim*2}")
    k("v_mul_lo_u32 v3, v3, s15")
    k("v_lshl_add_u32 v3, v2, 5, v3")
    if mode == 1:
        k("v_lshrrev_b32 v5, 5, v1")
        k("v_and_b32 v6, 1, v5")
        k("v_lshrrev_b32 v5, 1, v5")
        k("v_and_b32 v7, 31, v1")
        k("v_lshl_add_u32 v7, v5, 5, v7")
        k("s_lshl_b32 s14, s13, 6")
        k("v_add_u32 v7, s14, v7")
        k("v_mul_lo_u32 v4, v7, s15")
        k("v_lshl_add_u32 v4, v2, 5, v4")
        k(f"v_mov_b32 v8, {WS_WUT - WS_WGT}")
        k("v_mul_lo_u32 v8, v8, v6")
        k("v_add_u32 v4, v4, v8")
        k(f"s_mov_b32 s16, {WS_HL}")
        k(f"s_mov_b32 s17, {WS_WGT}")
    else:
        k("s_lshl_b32 s14, s13, 7")
        k("v_add_u32 v4, s14, v1")
        k("v_mul_lo_u32 v4, v4, s15")
        k("v_lshl_add_u32 v4, v2, 5, v4")
        k(f"s_mov_b32 s16, {WS_HA}")
        k(f"s_mov_b32 s17, {WS_WDT}")
    k(f"s_movk_i32 s18, {STR}")
    k("v_mul_lo_u32 v9, v1, s18")
    k("v_lshl_add_u32 v9, v2, 5, v9")
    k("v_and_b32 v10, 63, v0")
    k("v_lshrrev_b32 v11, 6, v0")
    k("v_and_b32 v12, 31, v10")
    k("v_lshrrev_b32 v13, 5, v10")
    k("v_and_b32 v14, 1, v11")
    k("v_lshrrev_b32 v15, 1, v11")
    k("v_lshl_add_u32 v16, v14, 6, v12")
    k("v_mul_lo_u32 v16, v16, s18")
    k("v_lshl_add_u32 v16, v13, 4, v16")
    k("v_lshl_add_u32 v17, v15, 6, v12")
    k("v_mul_lo_u32 v17, v17, s18")
    k("v_lshl_add_u32 v17, v13, 4, v17")
    k(f"v_add_u32 v17, {TILE}, v17")
    ACC = 64
    for r in range(64):
        k(f"v_mov_b32 v{ACC+r}, 0")
    nk = Kdim // 32
    k("buffer_load_dwordx4 v[20:23], v3, s[4:7], s16 offen")
    k("buffer_load_dwordx4 v[24:27], v3, s[4:7], s16 offen offset:16")
    k("buffer_load_dwordx4 v[28:31], v4, s[4:7], s17 offen")
    k("buffer_load_dwordx4 v[32:35], v4, s[4:7], s17 offen offset:16")
    k("s_waitcnt vmcnt(0)")
    k("ds_write_b128 v9, v[20:23]")
    k("ds_write_b128 v9, v[24:27] offset:16")
    k(f"ds_write_b128 v9, v[28:31] offset:{TILE}")
    k(f"ds_write_b128 v9, v[32:35] offset:{TILE+16}")
    k("s_waitcnt lgkmcnt(0)")
    k("s_barrier")
    k("s_mov_b32 s19, 0")
    k("s_mov_b32 s20, 0")
    k.label("loop")
    k("s_add_u32 s21, s19, 1")
    k(f"s_cmp_ge_u32 s21, {nk}")
    k(f"s_cbranch_scc1 {k.L('noload')}")
    k("s_lshl_b32 s22, s21, 6")
    k("s_add_u32 s23, s22, s16")
    k("s_add_u32 s24, s22, s17")
    k("buffer_load_dwordx4 v[20:23], v3, s[4:7], s23 offen")
    k("buffer_load_dwordx4 v[24:27], v3, s[4:7], s23 offen offset:16")
    k("buffer_load_dwordx4 v[28:31], v4, s[4:7], s24 offen")
    k("buffer_load_dwordx4 v[32:35], v4, s[4:7], s24 offen offset:16")
    k.label("noload")
    k("v_add_u32 v18, s20, v16")
    k("v_add_u32 v19, s20, v17")
    for kk in range(2):
        k(f"ds_read_b128 v[36:39], v19 offset:{kk*32}")
        k(f"ds_read_b128 v[40:43], v19 offset:{kk*32 + 32*STR}")
        k(f"ds_read_b128 v[44:47], v18 offset:{kk*32}")
        k(f"ds_read_b128 v[48:51], v18 offset:{kk*32 + 32*STR}")
        k("s_waitcnt lgkmcnt(0)")
        for wi in range(2):
            for xi in range(2):
                a = ACC + (wi * 2 + xi) * 16
                k(f"v_mfma_f32_32x32x16_bf16 v[{a}:{a+15}], v[{36+4*wi}:{39+4*wi}], v[{44+4*xi}:{47+4*xi}], v[{a}:{a+15}]")
    k(f"s_cmp_ge_u32 s21, {nk}")
    k(f"s_cbranch_scc1 {k.L('done')}")
    k(f"s_xor_b32 s20, s20, {2*TILE}")
    k("v_add_u32 v18, s20, v9")
    k("s_waitcnt vmcnt(0)")
    k("ds_write_b128 v18, v[20:23]")
    k("ds_write_b128 v18, v[24:27] offset:16")
    k(f"ds_write_b128 v18, v[28:31] offset:{TILE}")
    k(f"ds_write_b128 v18, v[32:35] offset:{TILE+16}")
    k("s_waitcnt lgkmcnt(0)")
    k("s_barrier")
    k("s_mov_b32 s19, s21")
    k(f"s_branch {k.L('loop')}")
    k.label("done")
    k("s_nop 15")
    k("s_mov_b32 s25, 0xffff0000")
    k("s_lshl_b32 s14, s12, 7")
    k("v_lshl_add_u32 v16, v14, 6, v12")
    k("v_add_u32 v16, s14, v16")
    if mode == 1:
        k("s_lshl_b32 s14, s13, 6")
        k("v_lshlrev_b32 v17, 5, v15")
        k("v_lshl_add_u32 v17, v13, 2, v17")
        k("v_add_u32 v17, s14, v17")
        k(f"s_movk_i32 s26, {F*2}")
        k("v_mul_lo_u32 v18, v16, s26")
        k("v_lshl_add_u32 v18, v17, 1, v18")
        k(f"s_mov_b32 s27, {WS_HA}")
        k(f"s_add_u32 s28, s27, {32*F*2}")
        k("v_mov_b32 v19, 0x3d372713")
        k("v_mov_b32 v20, 0x40135761")
        for xi in range(2):
            for rq in range(4):
                for e in range(4):
                    ga = ACC + (0 * 2 + xi) * 16 + 4 * rq + e
                    ua = ACC + (1 * 2 + xi) * 16 + 4 * rq + e
                    k(f"v_cvt_pk_bf16_f32 v21, v{ga}, v{ua}")
                    k("v_and_b32 v22, s25, v21")
                    k("v_lshlrev_b32 v21, 16, v21")
                    k("v_mul_f32 v23, v21, v21")
                    k("v_mul_f32 v23, v23, v19")
                    k("v_fma_f32 v23, v23, v21, v21")
                    k("v_mul_f32 v23, v23, v20")
                    k("v_exp_f32 v23, v23")
                    k("s_nop 0")
                    k("v_add_f32 v23, 1.0, v23")
                    k("v_rcp_f32 v23, v23")
                    k("s_nop 0")
                    k("v_fma_f32 v23, -v21, v23, v21")
                    k("v_cvt_pk_bf16_f32 v23, v23, v23")
                    k("v_lshlrev_b32 v23, 16, v23")
                    k(f"v_mul_f32 v{24+e}, v23, v22")
                k("v_cvt_pk_bf16_f32 v28, v24, v25")
                k("v_cvt_pk_bf16_f32 v29, v26, v27")
                k(f"buffer_store_dwordx2 v[28:29], v18, s[4:7], s{27+xi} offen offset:{rq*16}")
                k("s_nop 1")
    else:
        k("s_lshl_b32 s14, s13, 7")
        k("v_lshlrev_b32 v17, 6, v15")
        k("v_lshl_add_u32 v17, v13, 2, v17")
        k("v_add_u32 v17, s14, v17")
        k("s_movk_i32 s26, 1280")
        k("v_mul_lo_u32 v18, v16, s26")
        k("v_lshl_add_u32 v18, v17, 1, v18")
        k(f"s_mov_b32 s27, {WS_H}")
        k(f"s_add_u32 s28, s27, {32*1280}")
        k("s_mov_b32 s29, 0")
        k(f"s_mov_b32 s30, {32*1280}")
        for xi in range(2):
            for wi in range(2):
                for rq in range(4):
                    off = wi * 64 + rq * 16
                    k(f"buffer_load_dwordx2 v[20:21], v18, s[4:7], s{27+xi} offen offset:{off}")
                    k("s_waitcnt vmcnt(0)")
                    a = ACC + (wi * 2 + xi) * 16 + 4 * rq
                    k(f"v_cvt_pk_bf16_f32 v22, v{a}, v{a+1}")
                    k(f"v_cvt_pk_bf16_f32 v23, v{a+2}, v{a+3}")
                    for p in range(2):
                        k(f"v_lshlrev_b32 v24, 16, v{22+p}")
                        k(f"v_and_b32 v25, s25, v{22+p}")
                        k(f"v_lshlrev_b32 v26, 16, v{20+p}")
                        k(f"v_and_b32 v27, s25, v{20+p}")
                        k("v_add_f32 v24, v24, v26")
                        k("v_add_f32 v25, v25, v27")
                        k(f"v_cvt_pk_bf16_f32 v{28+p}, v24, v25")
                    k(f"buffer_store_dwordx2 v[28:29], v18, s[8:11], s{29+xi} offen offset:{off}")
                    k("s_nop 1")
    k.label("end")
    k("s_endpgm")
    return k, 4 * TILE


def main():
    kernels = []
    launches = []

    def add(kobj, grid, lds=0, block=256):
        kernels.append(kobj)
        launches.append(f"; @launch kernel={kobj.name} grid=({grid},1,1) block=({block},1,1) lds={lds}")

    from prep import gen_prep, gen_ln2
    from conv4 import gen_conv as gen_conv2
    kp, ldsp, np_ = gen_prep("prep_kernel")
    add(kp, np_, ldsp)
    kc, ldsc = gen_conv2("conv_kernel")
    add(kc, 640, ldsc, 192)

    from gemm5 import gen_gemm_dma
    from gemm7 import gen_gemm1
    g1, l1, n1, b1 = gen_gemm1("gemm1_kernel")
    add(g1, n1, l1, b1)
    g2, l2, n2, b2 = gen_gemm_dma("gemm2_kernel", 2)
    add(g2, n2, l2, b2)

    hdr = open(OUT + ".ref").read().split("; Override launch")[0]
    s = hdr + "\n".join(launches) + "\n"
    s += '.amdgcn_target "amdgcn-amd-amdhsa--gfx950"\n.text\n'
    for kk in kernels:
        s += kk.text()
    s += '.section .rodata,"a"\n'
    for kk in kernels:
        s += ".p2align 6\n" + kk.desc()
    open(OUT, "w").write(s)
    print("written", OUT, len(s))


if __name__ == "__main__":
    main()
```

```python
import os
EXP = os.environ.get('EXP', '')
from gen import K, srd, srd_fin, KARG, WS_SIZE, WS_HT, WS_HA, WS_CS, L, D, F


def gen_gemm_dma(name, mode):
    Kdim = 640 if mode == 1 else 1728
    NW = 8 if mode == 1 else 4
    TX = 256 if mode == 1 else 128
    TW = 128 if mode == 1 else 64
    NS = 3 if mode == 1 else 4
    ntm = L // TX
    ntn = 27 if mode == 1 else 10
    nwg = ntm * ntn
    nk = Kdim // 64
    RB = Kdim * 2
    XT_BYTES = TX * 128
    WT_BYTES = TW * 128
    STAGE = XT_BYTES + WT_BYTES
    NWI = 2
    LPW = 4 + NWI
    NWF = 2 if mode == 1 else 1
    lgm = {8: 3, 16: 4}[ntm]
    WRB = F * 2 if mode == 1 else D * 2
    k = K(name, 232)
    k(f"s_cmp_ge_u32 s2, {nwg}")
    k(f"s_cbranch_scc1 {k.L('end')}")
    t = [srd(k, 4, KARG['ws'], WS_SIZE), srd(k, 8, KARG['out'], L * D * 2)]
    if mode == 1:
        t += [srd(k, 44, KARG['wg'], D * F * 2), srd(k, 48, KARG['wu'], D * F * 2)]
    else:
        t += [srd(k, 44, KARG['wd'], D * F * 2)]
    k("v_lshrrev_b32 v1, 6, v0")
    k("v_and_b32 v2, 63, v0")
    if mode == 1:
        k("s_and_b32 s12, s2, 7")
        k("s_mul_i32 s12, s12, 27")
        k("s_lshr_b32 s13, s2, 3")
        k("s_add_u32 s3, s12, s13")
    else:
        k("s_mov_b32 s3, s2")
    k(f"s_and_b32 s12, s3, {ntm - 1}")
    k("v_readfirstlane_b32 s14, v1")
    k(f"s_lshr_b32 s13, s3, {lgm}")
    k("v_lshrrev_b32 v4, 4, v2")
    k("v_and_b32 v4, 1, v4")
    k("v_lshlrev_b32 v4, 2, v4")
    k("v_and_b32 v5, 7, v2")
    k("v_xor_b32 v19, v4, v5")
    k("v_lshrrev_b32 v3, 3, v2")
    k(f"v_mul_u32_u24 v4, {WRB}, v3")
    k("v_lshl_add_u32 v52, v19, 4, v4")
    k(f"v_add_u32 v53, {8 * WRB - 1024}, v52")
    VD = 6
    if mode == 1:
        k("v_lshlrev_b32 v4, 12, v3")
        k("v_lshl_add_u32 v4, v19, 4, v4")
        for i in range(4):
            k(f"v_add_u32 v{VD+i}, {i * 8 * 4096 - i * 1024}, v4")
    else:
        k(f"s_movk_i32 s15, {RB}")
        k("v_mul_lo_u32 v3, v3, s15")
        k("v_and_b32 v4, 7, v2")
        k("v_lshrrev_b32 v5, 4, v2")
        k("v_xor_b32 v4, v4, v5")
        k("v_xor_b32 v5, 4, v4")
        k("v_lshl_add_u32 v4, v4, 4, v3")
        k("v_lshl_add_u32 v5, v5, 4, v3")
        for i in range(4):
            k(f"v_add_u32 v{VD+i}, {i * 8 * RB - i * 1024}, v{4 + (i & 1)}")
    k("s_waitcnt lgkmcnt(0)")
    for x in t:
        srd_fin(k, x)
    if mode == 1:
        k("s_lshl_b32 s16, s12, 9")
        k("s_lshr_b32 s17, s14, 1")
        k("s_lshl_b32 s17, s17, 7")
        k("s_add_u32 s16, s16, s17")
        k("s_and_b32 s17, s14, 1")
        k("s_lshl_b32 s17, s17, 17")
        k("s_add_u32 s16, s16, s17")
        k(f"s_add_u32 s16, s16, {WS_HT}")
        k("s_lshr_b32 s18, s14, 2")
        k("s_cmp_eq_u32 s18, 0")
        k("s_cselect_b32 s44, s44, s48")
        k("s_cselect_b32 s45, s45, s49")
        k("s_and_b32 s18, s14, 3")
        k(f"s_mul_i32 s17, s18, {16 * WRB}")
        k("s_lshl_b32 s18, s13, 7")
        k("s_add_u32 s17, s17, s18")
        XADV = 64 * 4096
    else:
        k(f"s_mul_i32 s16, s12, {TX}")
        k("s_lshl_b32 s17, s14, 5")
        k("s_add_u32 s16, s16, s17")
        k("s_mul_i32 s16, s16, s15")
        k(f"s_add_u32 s16, s16, {WS_HA}")
        k(f"s_mul_i32 s17, s14, {16 * WRB}")
        k("s_lshl_b32 s18, s13, 7")
        k("s_add_u32 s17, s17, s18")
        XADV = 128
    k("s_lshl_b32 s19, s14, 12")
    k("s_lshl_b32 s20, s14, 11")
    k(f"s_add_u32 s20, s20, {XT_BYTES}")

    def issue_stage(st):
        so = st * STAGE
        k(f"s_add_u32 m0, s19, {so}")
        k("s_nop 0")
        for i in range(4):
            k(f"buffer_load_dwordx4 v{VD+i}, s[4:7], s16 offen offset:{i*1024} lds")
        k(f"s_add_u32 m0, s20, {so}")
        k(f"s_add_u32 s16, s16, {XADV}")
        for i in range(NWI):
            k(f"buffer_load_dwordx4 v{52+i}, s[44:47], s17 offen offset:{i*1024} lds")
        k(f"s_add_u32 s17, s17, {64 * WRB}")

    for st in range(NS - 1):
        issue_stage(st)
    k("v_and_b32 v10, 31, v2")
    k("v_lshrrev_b32 v11, 5, v2")
    if mode == 1:
        k("v_and_b32 v12, 3, v1")
        k("v_lshrrev_b32 v13, 2, v1")
    else:
        k("v_and_b32 v12, 1, v1")
        k("v_lshrrev_b32 v13, 1, v1")
    k("v_and_b32 v14, 15, v2")
    k("v_lshrrev_b32 v14, 2, v14")
    k("v_lshl_add_u32 v14, v11, 3, v14")
    k("v_lshlrev_b32 v14, 7, v14")
    k("v_lshrrev_b32 v3, 4, v2")
    k("v_and_b32 v3, 1, v3")
    k("v_lshlrev_b32 v3, 1, v3")
    k("v_and_b32 v4, 3, v2")
    k("v_lshrrev_b32 v4, 1, v4")
    k("v_add_u32 v3, v3, v4")
    k("v_lshrrev_b32 v4, 3, v2")
    k("v_and_b32 v4, 1, v4")
    k("v_lshlrev_b32 v4, 2, v4")
    k("v_xor_b32 v3, v3, v4")
    k("v_lshl_add_u32 v14, v3, 4, v14")
    k("v_and_b32 v4, 1, v2")
    k("v_lshl_add_u32 v14, v4, 3, v14")
    k("v_lshlrev_b32 v3, 6, v13")
    k("v_xor_b32 v16, v3, v14")
    k(f"v_add_u32 v16, {XT_BYTES}, v16")
    SA = 20
    if mode == 1:
        k("v_lshl_add_u32 v15, v12, 13, v14")
        for st in range(NS):
            k(f"v_add_u32 v{SA+8*st}, {st*STAGE}, v15")
            k(f"v_xor_b32 v{SA+8*st+1}, 64, v{SA+8*st}")
            k(f"v_add_u32 v{SA+8*st+4}, {st*STAGE}, v16")
    else:
        k("v_lshrrev_b32 v3, 1, v10")
        k("v_and_b32 v3, 7, v3")
        k("v_xor_b32 v3, v3, v11")
        k("v_lshlrev_b32 v3, 4, v3")
        k("v_lshl_add_u32 v15, v12, 6, v10")
        k("v_lshl_add_u32 v15, v15, 7, v3")
        for st in range(NS):
            for kk in range(4):
                k(f"v_xor_b32 v{SA+8*st+kk}, {32*kk}, v15")
                if st:
                    k(f"v_add_u32 v{SA+8*st+kk}, {st*STAGE}, v{SA+8*st+kk}")
            k(f"v_add_u32 v{SA+8*st+4}, {st*STAGE}, v16")
    FR = 56
    ACC = 120
    HR = 184
    nacc = NWF * 2
    for r in range(nacc * 16):
        k(f"v_mov_b32 v{ACC+r}, 0")
    k(f"s_mul_i32 s22, s12, {TX}")
    k("v_lshl_add_u32 v17, v12, 6, v10")
    k("v_add_u32 v17, s22, v17")
    k("s_lshl_b32 s22, s13, 6")
    k("v_lshlrev_b32 v18, 5, v13")
    k("v_lshl_add_u32 v18, v11, 2, v18")
    k("v_add_u32 v18, s22, v18")
    nextra = 0
    if mode == 2:
        k("v_lshlrev_b32 v3, 12, v18")
        k("v_lshl_add_u32 v3, v17, 1, v3")
        for rq in range(4):
            for e in range(4):
                k(f"s_mov_b32 s27, {WS_HT + (8*rq+e)*4096}")
                for xi in range(2):
                    k(f"buffer_load_ushort v{HR + xi*16 + 4*rq + e}, v3, s[4:7], s27 offen offset:{xi*64}")
        nextra = 32
    else:
        for r in range(6):
            k(f"v_mov_b32 v{HR+r}, 0")
        k(f"v_mov_b32 v{HR+6}, 0x3f803f80")
        k("v_lshlrev_b32 v3, 2, v18")
        k(f"s_mov_b32 s27, {WS_CS}")
        k(f"s_mov_b32 s28, {WS_CS + F*4}")
        for wi in range(2):
            for rq in range(4):
                r = 192 + 16 * wi + 4 * rq
                k(f"buffer_load_dwordx4 v[{r}:{r+3}], v3, s[4:7], s{27+wi} offen offset:{rq*32}")
        nextra = 8
        k("s_lshr_b32 s31, s14, 2")
    k(f"s_movk_i32 s26, {F*2 if mode == 1 else D*2}")
    k("v_mul_lo_u32 v17, v17, s26")
    k("v_lshl_add_u32 v17, v18, 1, v17")

    def reads(st, kk):
        b = FR + 16 * kk
        for wi in range(NWF):
            for hh in range(2):
                k(f"ds_read_b64_tr_b16 v[{b+4*wi+2*hh}:{b+4*wi+2*hh+1}], v{SA+8*st+4} offset:{wi*8192 + kk*2048 + hh*512}")
        for xi in range(2):
            if mode == 1:
                for hh in range(2):
                    k(f"ds_read_b64_tr_b16 v[{b+8+4*xi+2*hh}:{b+8+4*xi+2*hh+1}], v{SA+8*st+xi} offset:{kk*2048 + hh*512}")
            else:
                k(f"ds_read_b128 v[{b+8+4*xi}:{b+8+4*xi+3}], v{SA+8*st+kk} offset:{xi*4096}")

    def mfmas(kk):
        b = FR + 16 * kk
        for wi in range(NWF):
            for xi in range(2):
                a = ACC + (wi * 2 + xi) * 16
                k(f"v_mfma_f32_32x32x16_bf16 v[{a}:{a+15}], v[{b+4*wi}:{b+4*wi+3}], v[{b+8+4*xi}:{b+8+4*xi+3}], v[{a}:{a+15}]")
        if mode == 1:
            k("s_cmp_eq_u32 s31, 0")
            k(f"s_cbranch_scc0 {k.L('st1_%d' % cnt[0])}")
            for i in range(4):
                k(f"v_dot2c_f32_bf16 v{HR}, v{b+8+i}, v{HR+6}")
                k(f"v_dot2c_f32_bf16 v{HR+1}, v{b+8+i}, v{b+8+i}")
            k(f"s_branch {k.L('st2_%d' % cnt[0])}")
            k.label('st1_%d' % cnt[0])
            for i in range(4):
                k(f"v_dot2c_f32_bf16 v{HR}, v{b+12+i}, v{HR+6}")
                k(f"v_dot2c_f32_bf16 v{HR+1}, v{b+12+i}, v{b+12+i}")
            k.label('st2_%d' % cnt[0])
            cnt[0] += 1
    cnt = [0]
    nrd = 2 * NWF + (4 if mode == 1 else 2)
    W3, W2, W1 = min(15, 3 * nrd), min(15, 2 * nrd), min(15, nrd)

    def body(st):
        reads(st, 2)
        reads(st, 3)
        k(f"s_waitcnt lgkmcnt({W3})")
        mfmas(0)
        k(f"s_waitcnt lgkmcnt({W2})")
        mfmas(1)
        k(f"s_waitcnt vmcnt({(NS - 3) * LPW})")
        k("s_barrier")
        issue_stage((st + NS - 1) % NS)
        reads((st + 1) % NS, 0)
        reads((st + 1) % NS, 1)
        k(f"s_waitcnt lgkmcnt({W3})")
        mfmas(2)
        k(f"s_waitcnt lgkmcnt({W2})")
        mfmas(3)

    k(f"s_waitcnt vmcnt({min(63, (NS - 2) * LPW + nextra)})")
    k("s_barrier")
    reads(0, 0)
    reads(0, 1)
    T = nk - 1
    P = T % NS
    for i in range(P):
        body(i % NS)
    k(f"s_mov_b32 s39, {T // NS}")
    k.label("loop")
    for j in range(NS):
        body((P + j) % NS)
    k("s_sub_u32 s39, s39, 1")
    k("s_cmp_lg_u32 s39, 0")
    k(f"s_cbranch_scc1 {k.L('loop')}")
    st = T % NS
    reads(st, 2)
    reads(st, 3)
    k(f"s_waitcnt lgkmcnt({W3})")
    mfmas(0)
    k(f"s_waitcnt lgkmcnt({W2})")
    mfmas(1)
    k(f"s_waitcnt lgkmcnt({W1})")
    mfmas(2)
    k("s_waitcnt lgkmcnt(0)")
    mfmas(3)
    k("s_mov_b32 s25, 0xffff0000")
    if mode == 1:
        k("v_xor_b32 v3, 32, v2")
        k("v_lshlrev_b32 v3, 2, v3")
        k("s_nop 2")
        for r in range(2):
            k(f"ds_bpermute_b32 v{56+r}, v3, v{HR+r}")
        k("s_waitcnt lgkmcnt(0)")
        for r in range(2):
            k(f"v_add_f32 v{HR+r}, v{HR+r}, v{56+r}")
        k("s_waitcnt vmcnt(0)")
        k("s_barrier")
        k("v_lshl_add_u32 v3, v12, 1, v13")
        k("v_lshl_add_u32 v3, v3, 5, v10")
        k("v_lshlrev_b32 v3, 3, v3")
        k(f"ds_write_b64 v3, v[{HR}:{HR+1}]")
        k("s_waitcnt lgkmcnt(0)")
        k("s_barrier")
        k("v_lshl_add_u32 v3, v12, 6, v10")
        k("v_lshlrev_b32 v3, 3, v3")
        k("ds_read_b64 v[56:57], v3")
        k("ds_read_b64 v[58:59], v3 offset:256")
        k("s_waitcnt lgkmcnt(0)")
        k(f"v_mov_b32 v{HR}, v56")
        k(f"v_mov_b32 v{HR+1}, v58")
        k(f"v_mov_b32 v{HR+2}, v57")
        k(f"v_mov_b32 v{HR+3}, v59")
        k("s_mov_b32 s40, 0x3acccccd")
        for xi in range(2):
            k(f"v_mul_f32 v5, s40, v{HR+xi}")
            k(f"v_mul_f32 v6, s40, v{HR+2+xi}")
            k("v_fma_f32 v6, -v5, v5, v6")
            k("v_max_f32 v6, 0, v6")
            k("v_cvt_pk_bf16_f32 v6, v6, v5")
            k(f"v_and_b32 v{HR+xi}, s25, v6")
            k("v_lshlrev_b32 v6, 16, v6")
            k("v_add_f32 v6, 0x3727c5ac, v6")
            k("v_cvt_pk_bf16_f32 v6, v6, v6")
            k("v_lshlrev_b32 v6, 16, v6")
            k("v_sqrt_f32 v6, v6")
            k("s_nop 0")
            k("v_cvt_pk_bf16_f32 v6, v6, v6")
            k("v_lshlrev_b32 v6, 16, v6")
            k(f"v_rcp_f32 v{HR+2+xi}, v6")
        k(f"s_mov_b32 s27, {WS_HA}")
        k(f"s_add_u32 s28, s27, {32*F*2}")
        k("v_mov_b32 v19, 0x3d372713")
        k("v_mov_b32 v20, 0x40135761")
        k("s_waitcnt lgkmcnt(0)")
        for xi in range(2):
            for rq in range(4):
                for e in range(4):
                    ga = ACC + xi * 16 + 4 * rq + e
                    ua = ACC + (2 + xi) * 16 + 4 * rq + e
                    t0 = 96 + 4 * e
                    k(f"v_fma_f32 v{ga}, -v{HR+xi}, v{192+4*rq+e}, v{ga}")
                    k(f"v_fma_f32 v{ua}, -v{HR+xi}, v{208+4*rq+e}, v{ua}")
                    k(f"v_mul_f32 v{ga}, v{ga}, v{HR+2+xi}")
                    k(f"v_mul_f32 v{ua}, v{ua}, v{HR+2+xi}")
                    k(f"v_cvt_pk_bf16_f32 v{t0}, v{ga}, v{ua}")
                    k(f"v_and_b32 v{t0+1}, s25, v{t0}")
                    k(f"v_lshlrev_b32 v{t0}, 16, v{t0}")
                    k(f"v_mul_f32 v{t0+2}, v{t0}, v{t0}")
                    k(f"v_mul_f32 v{t0+2}, v{t0+2}, v19")
                    k(f"v_fma_f32 v{t0+2}, v{t0+2}, v{t0}, v{t0}")
                    k(f"v_mul_f32 v{t0+2}, v{t0+2}, v20")
                for e in range(4):
                    k(f"v_exp_f32 v{98+4*e}, v{98+4*e}")
                k("s_nop 0")
                for e in range(4):
                    k(f"v_add_f32 v{98+4*e}, 1.0, v{98+4*e}")
                for e in range(4):
                    k(f"v_rcp_f32 v{98+4*e}, v{98+4*e}")
                k("s_nop 0")
                for e in range(4):
                    t0 = 96 + 4 * e
                    k(f"v_fma_f32 v{t0+2}, -v{t0}, v{t0+2}, v{t0}")
                    k(f"v_cvt_pk_bf16_f32 v{t0+2}, v{t0+2}, v{t0+2}")
                    k(f"v_lshlrev_b32 v{t0+2}, 16, v{t0+2}")
                    k(f"v_mul_f32 v{t0+3}, v{t0+2}, v{t0+1}")
                o = 112 + 2 * ((xi * 4 + rq) & 3)
                k(f"v_cvt_pk_bf16_f32 v{o}, v99, v103")
                k(f"v_cvt_pk_bf16_f32 v{o+1}, v107, v111")
                k(f"buffer_store_dwordx2 v[{o}:{o+1}], v17, s[4:7], s{27+xi} offen offset:{rq*16}")
    else:
        k("s_mov_b32 s29, 0")
        k(f"s_mov_b32 s30, {32*1280}")
        k("s_nop 7")
        k("s_nop 1")
        k("s_waitcnt vmcnt(0)")
        for xi in range(2):
            for rq in range(4):
                a = ACC + xi * 16 + 4 * rq
                h = HR + xi * 16 + 4 * rq
                o = 56 + 2 * (xi * 4 + rq)
                for p in range(2):
                    k(f"v_cvt_pk_bf16_f32 v22, v{a+2*p}, v{a+2*p+1}")
                    k("v_lshlrev_b32 v24, 16, v22")
                    k("v_and_b32 v25, s25, v22")
                    k(f"v_lshlrev_b32 v26, 16, v{h+2*p}")
                    k(f"v_lshlrev_b32 v27, 16, v{h+2*p+1}")
                    k("v_add_f32 v24, v24, v26")
                    k("v_add_f32 v25, v25, v27")
                    k(f"v_cvt_pk_bf16_f32 v{o+p}, v24, v25")
                k(f"buffer_store_dwordx2 v[{o}:{o+1}], v17, s[8:11], s{29+xi} offen offset:{rq*16}")
    k.label("end")
    k("s_endpgm")
    return k, NS * STAGE, nwg, NW * 64
```

```python
import os, struct
EXP = os.environ.get('EXP', '')
from gen import K, srd, srd_fin, KARG, WS_SIZE, WS_UT, WS_XT, WS_KB, WS_HT, WS_H, WS_HL, WS_WGT, WS_WUT, WS_WDT, WS_CS, L, D, N, F


def fbits(x):
    return "0x%08x" % struct.unpack("<I", struct.pack("<f", float(x)))[0]


HI = list(range(8)) + [256 + 2 * i for i in range(4)] + [512, 516, 768, 772] + [1024 + 256 * i for i in range(4)] + [2048]


def ln_core(k, VB, SUM, TMP, MEAN, RS, BP, NR=8):
    for i in range(NR):
        k(f"v_add_f32 v{SUM+i}, v{VB+i*10}, v{VB+i*10+1}")
        for e in range(2, 10):
            k(f"v_add_f32 v{SUM+i}, v{SUM+i}, v{VB+i*10+e}")

    def reduce8():
        for h in range(6):
            for i in range(NR):
                k(f"ds_bpermute_b32 v{TMP+i}, v{BP+h}, v{SUM+i}")
            k("s_waitcnt lgkmcnt(0)")
            for i in range(NR):
                k(f"v_add_f32 v{SUM+i}, v{SUM+i}, v{TMP+i}")
    reduce8()
    k("s_mov_b32 s40, 0x3acccccd")
    k("s_mov_b32 s41, 0xffff0000")
    for i in range(NR):
        k(f"v_mul_f32 v{MEAN+i}, s40, v{SUM+i}")
    for i in range(NR):
        k(f"v_sub_f32 v{TMP+i}, v{VB+i*10}, v{MEAN+i}")
        k(f"v_mul_f32 v{SUM+i}, v{TMP+i}, v{TMP+i}")
        for e in range(1, 10):
            k(f"v_sub_f32 v{TMP+i}, v{VB+i*10+e}, v{MEAN+i}")
            k(f"v_fmac_f32 v{SUM+i}, v{TMP+i}, v{TMP+i}")
    reduce8()
    for i in range(NR):
        k(f"v_mul_f32 v{TMP+i}, s40, v{SUM+i}")
        k(f"v_cvt_pk_bf16_f32 v{TMP+i}, v{TMP+i}, v{MEAN+i}")
        k(f"v_and_b32 v{MEAN+i}, s41, v{TMP+i}")
        k(f"v_lshlrev_b32 v{TMP+i}, 16, v{TMP+i}")
        k(f"v_add_f32 v{TMP+i}, 0x3727c5ac, v{TMP+i}")
        k(f"v_cvt_pk_bf16_f32 v{TMP+i}, v{TMP+i}, v{TMP+i}")
        k(f"v_lshlrev_b32 v{TMP+i}, 16, v{TMP+i}")
    for i in range(NR):
        k(f"v_sqrt_f32 v{TMP+i}, v{TMP+i}")
    k("s_nop 0")
    for i in range(NR):
        k(f"v_cvt_pk_bf16_f32 v{TMP+i}, v{TMP+i}, v{TMP+i}")
        k(f"v_lshlrev_b32 v{TMP+i}, 16, v{TMP+i}")
    for i in range(NR):
        k(f"v_rcp_f32 v{RS+i}, v{TMP+i}")
    k("s_nop 0")


def norm_pair(k, dst, a, ma, ra, b, mb, rb, t0, t1):
    k(f"v_sub_f32 v{t0}, v{a}, v{ma}")
    k(f"v_sub_f32 v{t1}, v{b}, v{mb}")
    k(f"v_cvt_pk_bf16_f32 v{t0}, v{t0}, v{t1}")
    k(f"v_and_b32 v{t1}, s41, v{t0}")
    k(f"v_lshlrev_b32 v{t0}, 16, v{t0}")
    k(f"v_mul_f32 v{t0}, v{t0}, v{ra}")
    k(f"v_mul_f32 v{t1}, v{t1}, v{rb}")
    k(f"v_cvt_pk_bf16_f32 v{dst}, v{t0}, v{t1}")


def bp_addrs(k, BP, lane):
    for h, m in enumerate([1, 2, 4, 8, 16, 32]):
        k(f"v_xor_b32 v{BP+h}, {m}, v{lane}")
        k(f"v_lshlrev_b32 v{BP+h}, 2, v{BP+h}")


SUM, TMP, MEAN, RS, BP, RAW = 16, 24, 32, 40, 48, 64
TSTR = 80


def ln_core_packed(k):
    k("s_mov_b32 s40, 0x3acccccd")
    for i in range(8):
        for j in range(5):
            r = RAW + i * 5 + j
            k(f"v_lshlrev_b32 v6, 16, v{r}")
            k(f"v_and_b32 v7, s41, v{r}")
            if j == 0:
                k(f"v_add_f32 v{SUM+i}, v6, v7")
            else:
                k(f"v_add_f32 v{SUM+i}, v{SUM+i}, v6")
                k(f"v_add_f32 v{SUM+i}, v{SUM+i}, v7")

    def reduce8():
        for h in range(6):
            for i in range(8):
                k(f"ds_bpermute_b32 v{TMP+i}, v{BP+h}, v{SUM+i}")
            k("s_waitcnt lgkmcnt(0)")
            for i in range(8):
                k(f"v_add_f32 v{SUM+i}, v{SUM+i}, v{TMP+i}")
    reduce8()
    for i in range(8):
        k(f"v_mul_f32 v{MEAN+i}, s40, v{SUM+i}")
    for i in range(8):
        for j in range(5):
            r = RAW + i * 5 + j
            k(f"v_lshlrev_b32 v6, 16, v{r}")
            k(f"v_and_b32 v7, s41, v{r}")
            k(f"v_sub_f32 v6, v6, v{MEAN+i}")
            k(f"v_sub_f32 v7, v7, v{MEAN+i}")
            if j == 0:
                k(f"v_mul_f32 v{SUM+i}, v6, v6")
            else:
                k(f"v_fmac_f32 v{SUM+i}, v6, v6")
            k(f"v_fmac_f32 v{SUM+i}, v7, v7")
    reduce8()
    for i in range(8):
        k(f"v_mul_f32 v{TMP+i}, s40, v{SUM+i}")
        k(f"v_cvt_pk_bf16_f32 v{TMP+i}, v{TMP+i}, v{MEAN+i}")
        k(f"v_and_b32 v{MEAN+i}, s41, v{TMP+i}")
        k(f"v_lshlrev_b32 v{TMP+i}, 16, v{TMP+i}")
        k(f"v_add_f32 v{TMP+i}, 0x3727c5ac, v{TMP+i}")
        k(f"v_cvt_pk_bf16_f32 v{TMP+i}, v{TMP+i}, v{TMP+i}")
        k(f"v_lshlrev_b32 v{TMP+i}, 16, v{TMP+i}")
    for i in range(8):
        k(f"v_sqrt_f32 v{TMP+i}, v{TMP+i}")
    k("s_nop 0")
    for i in range(8):
        k(f"v_cvt_pk_bf16_f32 v{TMP+i}, v{TMP+i}, v{TMP+i}")
        k(f"v_lshlrev_b32 v{TMP+i}, 16, v{TMP+i}")
    for i in range(8):
        k(f"v_rcp_f32 v{RS+i}, v{TMP+i}")
    k("s_nop 0")


def norm_raw(k, dst, r, i):
    k(f"v_lshlrev_b32 v6, 16, v{r}")
    k(f"v_and_b32 v7, s41, v{r}")
    k(f"v_sub_f32 v6, v6, v{MEAN+i}")
    k(f"v_sub_f32 v7, v7, v{MEAN+i}")
    k(f"v_cvt_pk_bf16_f32 v6, v6, v7")
    k(f"v_and_b32 v7, s41, v6")
    k(f"v_lshlrev_b32 v6, 16, v6")
    k(f"v_mul_f32 v6, v6, v{RS+i}")
    k(f"v_mul_f32 v7, v7, v{RS+i}")
    k(f"v_cvt_pk_bf16_f32 v{dst}, v6, v7")


def tile_out(k, src_regs_fn, ws_base):
    for j in range(5):
        for ip in range(4):
            r0, r1 = src_regs_fn(2 * ip, j), src_regs_fn(2 * ip + 1, j)
            k(f"v_and_b32 v6, 0xffff, v{r0}")
            k(f"v_lshl_or_b32 v{104+ip}, v{r1}, 16, v6")
            k(f"v_lshrrev_b32 v6, 16, v{r0}")
            k(f"v_and_or_b32 v{108+ip}, v{r1}, s41, v6")
        k(f"ds_write_b128 v8, v[104:107] offset:{j*128*TSTR}")
        k(f"ds_write_b128 v8, v[108:111] offset:{j*128*TSTR + TSTR}")
    k("s_waitcnt lgkmcnt(0)")
    k("s_barrier")
    for it in range(10):
        k(f"ds_read_b128 v[{104+4*(it%4)}:{107+4*(it%4)}], v9 offset:{it*64*TSTR}")
        k(f"s_mov_b32 s15, {ws_base + it*64*4096}")
        k("s_waitcnt lgkmcnt(0)")
        k(f"buffer_store_dwordx4 v[{104+4*(it%4)}:{107+4*(it%4)}], v10, s[8:11], s15 offen")
    k("s_barrier")


def role_ln1(k):
    if 'noln1' in EXP:
        k("s_endpgm")
    k("v_and_b32 v1, 63, v0")
    k("v_lshrrev_b32 v2, 6, v0")
    k("s_lshl_b32 s3, s2, 5")
    k("v_lshlrev_b32 v4, 3, v2")
    k("v_add_u32 v4, s3, v4")
    k("s_movk_i32 s12, 1280")
    k("v_mul_lo_u32 v3, v4, s12")
    k("v_lshl_add_u32 v3, v1, 2, v3")
    for i in range(8):
        k(f"s_movk_i32 s13, {i*1280}")
        for j in range(5):
            k(f"buffer_load_dword v{RAW+i*5+j}, v3, s[4:7], s13 offen offset:{j*256}")
    bp_addrs(k, BP, 1)
    k("s_mov_b32 s41, 0xffff0000")
    k(f"v_mul_u32_u24 v8, {2*TSTR}, v1")
    k("v_lshl_add_u32 v8, v2, 4, v8")
    k("v_lshrrev_b32 v9, 2, v0")
    k("v_and_b32 v11, 3, v0")
    k("v_lshlrev_b32 v10, 12, v9")
    k("v_lshl_add_u32 v10, v11, 4, v10")
    k("s_lshl_b32 s3, s2, 6")
    k("v_add_u32 v10, s3, v10")
    k(f"v_mul_u32_u24 v9, {TSTR}, v9")
    k("v_lshl_add_u32 v9, v11, 4, v9")
    k("s_waitcnt vmcnt(0)")
    tile_out(k, lambda i, j: RAW + i * 5 + j, WS_XT)
    ln_core_packed(k)
    for i in range(8):
        for j in range(5):
            norm_raw(k, RAW + i * 5 + j, RAW + i * 5 + j, i)
    tile_out(k, lambda i, j: RAW + i * 5 + j, WS_UT)
    k("s_endpgm")


def role_transpose(k, tag, sreg, R, C, ws_dst, wg_reg):
    if 'notr' in EXP:
        k("s_endpgm")
    ntile_c = C // 64
    magic = (1 << 32) // ntile_c + 1
    k(f"s_mov_b32 s12, {magic}")
    k(f"s_mul_hi_u32 s13, s{wg_reg}, s12")
    k(f"s_mul_i32 s14, s13, {ntile_c}")
    k(f"s_sub_u32 s14, s{wg_reg}, s14")
    k("v_lshrrev_b32 v1, 2, v0")
    k("v_and_b32 v2, 3, v0")
    k("s_lshl_b32 s15, s13, 6")
    k("v_add_u32 v3, s15, v1")
    k(f"s_movk_i32 s16, {C*2}")
    k("v_mul_lo_u32 v3, v3, s16")
    k("s_lshl_b32 s17, s14, 7")
    k("v_lshl_add_u32 v4, v2, 5, s17")
    k("v_add_u32 v3, v3, v4")
    k(f"buffer_load_dwordx4 v[8:11], v3, s[{sreg}:{sreg+3}], 0 offen")
    k(f"buffer_load_dwordx4 v[12:15], v3, s[{sreg}:{sreg+3}], 0 offen offset:16")
    k("s_movk_i32 s18, 2080")
    k("v_mul_lo_u32 v5, v2, s18")
    k("v_lshl_add_u32 v5, v1, 1, v5")
    k("s_waitcnt vmcnt(0)")
    for e in range(16):
        r = 8 + e // 2
        if e % 2 == 0:
            k(f"ds_write_b16 v5, v{r} offset:{e*130}")
        else:
            k(f"ds_write_b16_d16_hi v5, v{r} offset:{e*130}")
    k("s_waitcnt lgkmcnt(0)")
    k("s_barrier")
    k("s_movk_i32 s18, 130")
    k("v_mul_lo_u32 v5, v1, s18")
    k("v_lshl_add_u32 v5, v2, 5, v5")
    k("ds_read_b128 v[8:11], v5")
    k("ds_read_b128 v[12:15], v5 offset:16")
    k("s_lshl_b32 s15, s14, 6")
    k("v_add_u32 v3, s15, v1")
    k(f"s_movk_i32 s16, {R*2}")
    k("v_mul_lo_u32 v3, v3, s16")
    k("s_lshl_b32 s17, s13, 7")
    k("v_lshl_add_u32 v4, v2, 5, s17")
    k("v_add_u32 v3, v3, v4")
    k(f"s_mov_b32 s19, {ws_dst}")
    k("s_waitcnt lgkmcnt(0)")
    k("buffer_store_dwordx4 v[8:11], v3, s[8:11], s19 offen")
    k("buffer_store_dwordx4 v[12:15], v3, s[8:11], s19 offen offset:16")
    k("s_endpgm")


RSTR = 144
ARR = 24 * RSTR
WAVE_LDS = 2 * ARR
TB = 4 * WAVE_LDS
KG_LDS = TB + 8448


def role_kgen(k, ch_reg):
    if 'nokgen' in EXP:
        k("s_endpgm")
    k("v_and_b32 v1, 63, v0")
    k("v_lshrrev_b32 v2, 6, v0")
    k("v_and_b32 v3, 31, v1")
    k("v_lshrrev_b32 v4, 5, v1")
    k(f"s_lshl_b32 s12, s{ch_reg}, 8")
    k("v_lshl_add_u32 v5, v2, 5, v3")
    k("v_lshlrev_b32 v5, 1, v5")
    k("v_add_u32 v5, s12, v5")
    for idx, s in enumerate([20, 24, 28, 32]):
        k(f"buffer_load_ushort v{8+idx}, v5, s[{s}:{s+3}], 0 offen")
    k(f"s_lshl_b32 s12, s{ch_reg}, 1")
    k("v_mov_b32 v6, s12")
    k("buffer_load_ushort v12, v6, s[36:39], 0 offen")
    k(f"v_mul_u32_u24 v20, {WAVE_LDS}, v2")
    k("v_lshl_add_u32 v21, v3, 2, v20")
    k(f"v_mul_u32_u24 v23, {11*RSTR}, v4")
    k("v_add_u32 v21, v21, v23")
    k("v_cvt_f32_u32 v22, v4")
    k("v_lshlrev_b32 v29, 3, v3")
    k("v_cvt_f32_u32 v29, v29")
    k("v_lshlrev_b32 v28, 4, v4")
    k("s_mov_b32 s41, 0xffff0000")
    k("s_mov_b32 s42, 0x3fb8aa3b")
    k("s_waitcnt vmcnt(0)")
    for r in range(8, 13):
        k(f"v_lshlrev_b32 v{r}, 16, v{r}")
    k("v_mul_f32 v12, s42, v12")
    k("v_mul_f32 v8, s42, v8")
    k("v_exp_f32 v12, v12")
    k("v_exp_f32 v8, v8")
    k("s_nop 0")
    k("v_cvt_pk_bf16_f32 v12, v12, v8")
    k("v_and_b32 v8, s41, v12")
    k("v_lshlrev_b32 v12, 16, v12")
    k("v_mul_f32 v8, v8, v12")
    k("v_mul_f32 v8, s42, v8")
    k("v_sub_f32 v8, 0, v8")
    k("v_mul_f32 v9, v9, v12")
    k("v_mul_f32 v9, 0x3e22f983, v9")
    k("v_mul_f32 v10, v10, v12")
    k("v_mul_f32 v11, v11, v12")
    k("v_add_f32 v10, v10, v10")
    k("v_add_f32 v11, v11, v11")
    for s_ in range(4):
        for t in range(4):
            r = 80 + 2 * (4 * s_ + t)
            k(f"v_add_u32 v30, {(8*s_+t)*4}, v28")
            k(f"ds_bpermute_b32 v{r}, v30, v8")
            k(f"ds_bpermute_b32 v{r+1}, v30, v9")
    for t in range(11):
        p0 = HI[t]
        p1 = HI[min(11 + t, 20)]
        k(f"v_mov_b32 v30, {fbits(p0)}")
        k(f"v_fmamk_f32 v30, v22, {fbits(p1 - p0)}, v30")
        k("v_mul_f32 v31, v8, v30")
        k("v_mul_f32 v32, v9, v30")
        k("v_exp_f32 v31, v31")
        k("v_fract_f32 v32, v32")
        k("s_nop 0")
        k("v_cos_f32 v33, v32")
        k("v_sin_f32 v34, v32")
        k("s_nop 0")
        k("v_mul_f32 v36, v10, v33")
        k("v_mul_f32 v37, v10, v34")
        k("v_fma_f32 v36, -v11, v34, v36")
        k("v_fma_f32 v37, v11, v33, v37")
        k("v_mul_f32 v36, v36, v31")
        k("v_mul_f32 v37, v37, -v31")
        k("v_cvt_pk_bf16_f32 v38, v36, v37")
        k("v_lshlrev_b32 v39, 16, v38")
        k("v_and_b32 v40, s41, v38")
        k("v_sub_f32 v36, v36, v39")
        k("v_sub_f32 v37, v37, v40")
        k("v_cvt_pk_bf16_f32 v39, v36, v37")
        k(f"ds_write_b32 v21, v38 offset:{t*RSTR}")
        k(f"ds_write_b32 v21, v39 offset:{t*RSTR + ARR}")
    k("s_waitcnt lgkmcnt(0)")
    k(f"v_mul_u32_u24 v41, {RSTR}, v3")
    k("v_min_u32 v41, %d, v41" % (23 * RSTR))
    k("v_lshl_add_u32 v41, v4, 4, v41")
    k("v_add_u32 v41, v41, v20")
    ACC = 64
    for r in range(16):
        k(f"v_mov_b32 v{ACC+r}, 0")
    for s_ in range(4):
        bh = 44 + 8 * (s_ & 1)
        ah = 112 + 8 * (s_ & 1)
        k(f"ds_read_b128 v[{ah}:{ah+3}], v41 offset:{s_*32}")
        k(f"ds_read_b128 v[{ah+4}:{ah+7}], v41 offset:{ARR + s_*32}")
        for t in range(4):
            r = 80 + 2 * (4 * s_ + t)
            k(f"v_mul_f32 v31, v{r}, v29")
            k(f"v_mul_f32 v32, v{r+1}, v29")
            k("v_exp_f32 v31, v31")
            k("v_fract_f32 v32, v32")
            k("s_nop 0")
            k("v_cos_f32 v33, v32")
            k("v_sin_f32 v34, v32")
            k("s_nop 0")
            k("v_mul_f32 v36, v33, v31")
            k("v_mul_f32 v37, v34, v31")
            k(f"v_cvt_pk_bf16_f32 v{bh+t}, v36, v37")
            k(f"v_lshlrev_b32 v39, 16, v{bh+t}")
            k(f"v_and_b32 v40, s41, v{bh+t}")
            k("v_sub_f32 v36, v36, v39")
            k("v_sub_f32 v37, v37, v40")
            k(f"v_cvt_pk_bf16_f32 v{bh+4+t}, v36, v37")
        k("s_waitcnt lgkmcnt(0)")
        k("s_nop 0")
        k(f"v_mfma_f32_32x32x16_bf16 v[{ACC}:{ACC+15}], v[{ah}:{ah+3}], v[{bh}:{bh+3}], v[{ACC}:{ACC+15}]")
        k(f"v_mfma_f32_32x32x16_bf16 v[{ACC}:{ACC+15}], v[{ah}:{ah+3}], v[{bh+4}:{bh+7}], v[{ACC}:{ACC+15}]")
        k(f"v_mfma_f32_32x32x16_bf16 v[{ACC}:{ACC+15}], v[{ah+4}:{ah+7}], v[{bh}:{bh+3}], v[{ACC}:{ACC+15}]")
    k("v_lshlrev_b32 v42, 9, v4")
    k("v_lshl_add_u32 v42, v3, 2, v42")
    k("v_add_u32 v42, v42, v20")
    k("s_nop 7")
    k("s_nop 3")
    for r in range(16):
        row0 = 8 * (r >> 2) + (r & 3)
        if row0 < 21:
            k(f"ds_write_b32 v42, v{ACC+r} offset:{row0*128}")
    k("s_waitcnt lgkmcnt(0)")
    k("s_barrier")
    for it in range(3):
        k(f"v_add_u32 v43, {it*256}, v0")
        k("v_lshlrev_b32 v44, 2, v43")
        for w in range(4):
            k(f"ds_read_b32 v{45+w}, v44 offset:{w*WAVE_LDS}")
        k("v_lshrrev_b32 v50, 5, v43")
        k("v_and_b32 v51, 31, v43")
        k("v_mov_b32 v52, v50")
        k("v_subrev_u32 v53, 8, v50")
        k("v_lshlrev_b32 v53, 1, v53")
        k("v_add_u32 v53, 0x100, v53")
        k("v_cmp_le_u32 vcc, 8, v50")
        k("v_subrev_u32 v54, 12, v50")
        k("v_and_b32 v55, 1, v54")
        k("v_cndmask_b32 v52, v52, v53, vcc")
        k("v_lshlrev_b32 v55, 2, v55")
        k("v_lshrrev_b32 v54, 1, v54")
        k("v_lshl_add_u32 v54, v54, 8, v55")
        k("v_add_u32 v54, 0x200, v54")
        k("v_cmp_le_u32 vcc, 12, v50")
        k("v_subrev_u32 v53, 16, v50")
        k("v_lshlrev_b32 v53, 8, v53")
        k("v_cndmask_b32 v52, v52, v54, vcc")
        k("v_add_u32 v53, 0x400, v53")
        k("v_cmp_le_u32 vcc, 16, v50")
        k("s_nop 1")
        k("v_cndmask_b32 v52, v52, v53, vcc")
        k("v_lshl_add_u32 v52, v51, 3, v52")
        k("v_min_u32 v52, 0x801, v52")
        k("v_cmp_gt_u32 vcc, 0x2a0, v43")
        k("v_mov_b32 v53, 0x801")
        k("s_nop 0")
        k("v_cndmask_b32 v52, v53, v52, vcc")
        k("v_lshlrev_b32 v52, 2, v52")
        k("s_waitcnt lgkmcnt(0)")
        k("v_add_f32 v45, v45, v46")
        k("v_add_f32 v47, v47, v48")
        k("v_add_f32 v45, v45, v47")
        k(f"ds_write_b32 v52, v45 offset:{TB}")
    k("s_waitcnt lgkmcnt(0)")
    k("s_barrier")
    k("v_lshlrev_b32 v43, 3, v0")
    k("v_sub_u32 v43, 0x7ff, v43")
    for e in range(8):
        k(f"v_subrev_u32 v44, {e}, v43")
        k("v_cvt_f32_u32 v44, v44")
        k("v_cvt_pk_bf16_f32 v44, v44, v44")
        k("v_lshlrev_b32 v44, 16, v44")
        k("v_cvt_u32_f32 v44, v44")
        k("v_lshlrev_b32 v44, 2, v44")
        k(f"ds_read_b32 v{48+e}, v44 offset:{TB}")
    k(f"s_lshl_b32 s12, s{ch_reg}, 12")
    k(f"s_add_u32 s12, s12, {WS_KB}")
    k("v_lshlrev_b32 v44, 4, v0")
    k("s_waitcnt lgkmcnt(0)")
    for e in range(4):
        k(f"v_cvt_pk_bf16_f32 v{56+e}, v{48+2*e}, v{49+2*e}")
    k("buffer_store_dwordx4 v[56:59], v44, s[8:11], s12 offen")
    k("s_endpgm")


def role_colsum(k, wg_reg):
    k(f"s_cmp_ge_u32 s{wg_reg}, 27")
    k("s_cselect_b32 s44, s48, s44")
    k("s_cselect_b32 s45, s49, s45")
    k("s_cselect_b32 s13, 27, 0")
    k(f"s_sub_u32 s13, s{wg_reg}, s13")
    k("v_and_b32 v1, 31, v0")
    k("v_lshrrev_b32 v2, 5, v0")
    k(f"v_mul_u32_u24 v3, {80 * F * 2}, v2")
    k("v_lshl_add_u32 v3, v1, 2, v3")
    k("s_lshl_b32 s14, s13, 7")
    k("v_mov_b32 v4, 0")
    k("v_mov_b32 v5, 0")
    k("s_mov_b32 s41, 0xffff0000")
    k("s_mov_b32 s15, 0")
    k.label("csl")
    for i in range(16):
        k(f"s_add_u32 s16, s14, {i * F * 2}")
        k(f"buffer_load_dword v{8+i}, v3, s[44:47], s16 offen")
    k(f"s_add_u32 s14, s14, {16 * F * 2}")
    for i in range(16):
        k(f"s_waitcnt vmcnt({15-i})")
        k(f"v_lshlrev_b32 v6, 16, v{8+i}")
        k(f"v_and_b32 v7, s41, v{8+i}")
        k("v_add_f32 v4, v4, v6")
        k("v_add_f32 v5, v5, v7")
    k("s_add_u32 s15, s15, 1")
    k("s_cmp_lt_u32 s15, 5")
    k(f"s_cbranch_scc1 {k.L('csl')}")
    k("v_lshlrev_b32 v6, 3, v0")
    k("ds_write_b64 v6, v[4:5]")
    k("s_waitcnt lgkmcnt(0)")
    k("s_barrier")
    k("v_lshlrev_b32 v6, 3, v1")
    for gq in range(8):
        k(f"ds_read_b64 v[{8+2*gq}:{9+2*gq}], v6 offset:{gq*256}")
    k("s_waitcnt lgkmcnt(0)")
    for gq in range(1, 8):
        k(f"v_add_f32 v8, v8, v{8+2*gq}")
        k(f"v_add_f32 v9, v9, v{9+2*gq}")
    k(f"s_lshl_b32 s14, s{wg_reg}, 8")
    k(f"s_add_u32 s14, s14, {WS_CS}")
    k("v_cmp_gt_u32 vcc, 32, v0")
    k("s_and_saveexec_b64 s[16:17], vcc")
    k(f"s_cbranch_execz {k.L('end')}")
    k("buffer_store_dwordx2 v[8:9], v6, s[8:11], s14 offen")
    k("s_endpgm")


def gen_prep(name):
    k = K(name, 128)
    NKG, NLN, NCS = 640, 64, 54
    total = NKG + NLN + NCS
    k(f"s_cmp_ge_u32 s2, {total}")
    k(f"s_cbranch_scc1 {k.L('end')}")
    t = [srd(k, 4, KARG['u'], L * D * 2), srd(k, 8, KARG['ws'], WS_SIZE),
         srd(k, 20, KARG['logA'], D * N * 2), srd(k, 24, KARG['Aim'], D * N * 2), srd(k, 28, KARG['Cr'], D * N * 2),
         srd(k, 32, KARG['Ci'], D * N * 2), srd(k, 36, KARG['logdt'], D * 2),
         srd(k, 44, KARG['wg'], D * F * 2), srd(k, 48, KARG['wu'], D * F * 2)]
    k("s_waitcnt lgkmcnt(0)")
    for x in t:
        srd_fin(k, x)
    k(f"s_cmp_lt_u32 s2, {NLN}")
    k(f"s_cbranch_scc1 {k.L('ln1')}")
    k(f"s_sub_u32 s56, s2, {NLN}")
    k(f"s_cmp_lt_u32 s56, {NCS}")
    k(f"s_cbranch_scc1 {k.L('cs')}")
    k(f"s_sub_u32 s56, s56, {NCS}")
    role_kgen(k, 56)
    k.label("cs")
    role_colsum(k, 56)
    k.label("ln1")
    role_ln1(k)
    k.label("end")
    k("s_endpgm")
    return k, max(KG_LDS, 640 * TSTR), total


def gen_ln2(name):
    k = K(name, 128)
    total = 64
    k(f"s_cmp_ge_u32 s2, {total}")
    k(f"s_cbranch_scc1 {k.L('end')}")
    t = [srd(k, 8, KARG['ws'], WS_SIZE)]
    k("v_and_b32 v1, 63, v0")
    k("v_lshrrev_b32 v2, 6, v0")
    k("v_lshrrev_b32 v9, 2, v0")
    k("v_and_b32 v11, 3, v0")
    k("v_lshlrev_b32 v10, 12, v9")
    k("v_lshl_add_u32 v10, v11, 4, v10")
    k("s_lshl_b32 s3, s2, 6")
    k("v_add_u32 v10, s3, v10")
    k(f"v_mul_u32_u24 v9, {TSTR}, v9")
    k("v_lshl_add_u32 v9, v11, 4, v9")
    k("s_waitcnt lgkmcnt(0)")
    for x in t:
        srd_fin(k, x)
    for it in range(10):
        k(f"s_mov_b32 s15, {WS_HT + it*64*4096}")
        k(f"buffer_load_dwordx4 v[{RAW+4*it}:{RAW+4*it+3}], v10, s[8:11], s15 offen")
    bp_addrs(k, BP, 1)
    k("s_lshl_b32 s3, s2, 5")
    k("v_lshlrev_b32 v4, 3, v2")
    k("v_add_u32 v4, s3, v4")
    k("s_movk_i32 s12, 1280")
    k("v_mul_lo_u32 v3, v4, s12")
    k("v_lshl_add_u32 v3, v1, 2, v3")
    k(f"v_mul_u32_u24 v8, {2*TSTR}, v1")
    k("v_lshl_add_u32 v8, v2, 4, v8")
    k("s_mov_b32 s41, 0xffff0000")
    for it in range(10):
        k(f"s_waitcnt vmcnt({9-it})")
        k(f"ds_write_b128 v9, v[{RAW+4*it}:{RAW+4*it+3}] offset:{it*64*TSTR}")
    k("s_waitcnt lgkmcnt(0)")
    k("s_barrier")
    for j in range(5):
        k(f"ds_read_b128 v[104:107], v8 offset:{j*128*TSTR}")
        k(f"ds_read_b128 v[108:111], v8 offset:{j*128*TSTR + TSTR}")
        k("s_waitcnt lgkmcnt(0)")
        for ip in range(4):
            k(f"v_and_b32 v6, 0xffff, v{104+ip}")
            k(f"v_lshl_or_b32 v{RAW+(2*ip)*5+j}, v{108+ip}, 16, v6")
            k(f"v_lshrrev_b32 v6, 16, v{104+ip}")
            k(f"v_and_or_b32 v{RAW+(2*ip+1)*5+j}, v{108+ip}, s41, v6")
    for i in range(8):
        k(f"s_mov_b32 s16, {WS_H + i*1280}")
        for j in range(5):
            k(f"buffer_store_dword v{RAW+i*5+j}, v3, s[8:11], s16 offen offset:{j*256}")
    ln_core_packed(k)
    for i in range(8):
        k(f"s_mov_b32 s15, {WS_HL + i*1280}")
        for j in range(5):
            o = 104 + (i * 5 + j) % 8
            norm_raw(k, o, RAW + i * 5 + j, i)
            k(f"buffer_store_dword v{o}, v3, s[8:11], s15 offen offset:{j*256}")
    k.label("end")
    k("s_endpgm")
    return k, 640 * TSTR, total
```

```python
import sys
def gen(mode, depth, contig, nit=80):
    s = '''.amdgcn_target "amdgcn-amd-amdhsa--gfx950"
.text
.globl t_kernel
.p2align 8
.type t_kernel,@function
t_kernel:
    s_load_dwordx2 s[4:5], s[0:1], 0
    s_load_dwordx2 s[8:9], s[0:1], 8
    v_and_b32 v2, 63, v0
    v_lshrrev_b32 v1, 6, v0
    s_nop 0
    v_readfirstlane_b32 s14, v1
    s_waitcnt lgkmcnt(0)
    s_mov_b32 s6, 0x2000000
    s_mov_b32 s7, 0x00020000
    s_mov_b32 s10, 0x10000
    s_mov_b32 s11, 0x00020000
'''
    if contig:
        s += "    v_lshlrev_b32 v4, 4, v2\n"
    else:
        s += "    v_lshrrev_b32 v3, 3, v2\n    v_mul_u32_u24 v4, 1280, v3\n    v_and_b32 v5, 7, v2\n    v_lshl_add_u32 v4, v5, 4, v4\n"
    s += '''    s_and_b32 s15, s2, 15
    s_lshl_b32 s15, s15, 19
    s_lshl_b32 s16, s14, 16
    s_add_u32 s15, s15, s16
    s_lshl_b32 s17, s14, 13
    s_mov_b32 m0, s17
    s_memtime s[20:21]
    s_mov_b32 s18, 0
L0:
'''
    for i in range(6):
        if mode == "lds":
            s += f"    buffer_load_dwordx4 v4, s[4:7], s15 offen offset:{(i%4)*1024} lds\n"
        else:
            s += f"    buffer_load_dwordx4 v[{16+4*i}:{19+4*i}], v4, s[4:7], s15 offen offset:{(i%4)*1024}\n"
        if i == 3:
            s += "    s_add_u32 s15, s15, %d\n" % (4096 if contig else 128)
    s += f'''    s_add_u32 s15, s15, {2048 if contig else 10240 - 128}
    s_waitcnt vmcnt({depth})
    s_add_u32 s18, s18, 1
    s_cmp_lt_u32 s18, {nit}
    s_cbranch_scc1 L0
    s_waitcnt vmcnt(0)
    s_memtime s[22:23]
    s_waitcnt lgkmcnt(0)
    s_sub_u32 s22, s22, s20
    v_mov_b32 v5, s22
    s_lshl_b32 s19, s2, 5
    s_lshl_b32 s16, s14, 2
    s_add_u32 s19, s19, s16
    v_mov_b32 v6, s19
    buffer_store_dword v5, v6, s[8:11], 0 offen
    s_endpgm
.section .rodata,"a"
.p2align 6
.amdhsa_kernel t_kernel
  .amdhsa_next_free_vgpr 64
  .amdhsa_next_free_sgpr 32
  .amdhsa_accum_offset 64
  .amdhsa_group_segment_fixed_size 131072
  .amdhsa_kernarg_size 16
  .amdhsa_user_sgpr_count 2
  .amdhsa_user_sgpr_kernarg_segment_ptr 1
  .amdhsa_system_sgpr_workgroup_id_x 1
.end_amdhsa_kernel
.amdgpu_metadata
---
amdhsa.version: [1, 2]
amdhsa.kernels:
  - .name: t_kernel
    .symbol: t_kernel.kd
    .kernarg_segment_size: 16
    .kernarg_segment_align: 8
    .group_segment_fixed_size: 131072
    .private_segment_fixed_size: 0
    .wavefront_size: 64
    .sgpr_count: 32
    .vgpr_count: 64
    .max_flat_workgroup_size: 512
    .args:
      - {{.name: i, .size: 8, .offset: 0, .value_kind: global_buffer, .address_space: global}}
      - {{.name: o, .size: 8, .offset: 8, .value_kind: global_buffer, .address_space: global}}
...
.end_amdgpu_metadata
'''
    return s
for mode in ["lds","vgpr"]:
    for depth in [6, 12, 24, 48]:
        for contig in [0,1]:
            if mode=="vgpr" and depth>6: continue
            open(f"t_{mode}_{depth}_{contig}.s","w").write(gen(mode, depth, contig))
```

```python
import os
EXP = os.environ.get('EXP', '')
from gen import K, srd, srd_fin, KARG, WS_SIZE, WS_HT, WS_HA, WS_CS, L, D, F


HTP = 4224


def gen_gemm_dma(name, mode):
    Kdim = 640 if mode == 1 else 1728
    NW = 8 if mode == 1 else 4
    TX = 256 if mode == 1 else 128
    TW = 128 if mode == 1 else 64
    NS = 3 if mode == 1 else int(os.environ.get("G2NS","6"))
    ntm = L // TX
    ntn = 27 if mode == 1 else 10
    nwg = ntm * ntn
    nk = Kdim // 64
    RB = Kdim * 2
    XT_BYTES = TX * 128
    WT_BYTES = TW * 128
    STAGE = XT_BYTES + WT_BYTES
    NWI = 2
    LPW = 4 + NWI
    NWF = 2 if mode == 1 else 1
    lgm = {8: 3, 16: 4}[ntm]
    WRB = F * 2 if mode == 1 else D * 2
    k = K(name, 256)
    k(f"s_cmp_ge_u32 s2, {nwg}")
    k(f"s_cbranch_scc1 {k.L('end')}")
    t = [srd(k, 4, KARG['ws'], WS_SIZE), srd(k, 8, KARG['out'], L * D * 2)]
    if mode == 1:
        t += [srd(k, 44, KARG['wg'], D * F * 2), srd(k, 48, KARG['wu'], D * F * 2)]
    else:
        t += [srd(k, 44, KARG['wd'], D * F * 2)]
    if 'stamp' in EXP:
        k("s_memtime s[60:61]")
    k("v_lshrrev_b32 v1, 6, v0")
    k("v_and_b32 v2, 63, v0")
    if mode == 1:
        k("s_and_b32 s12, s2, 7")
        k("s_mul_i32 s12, s12, 27")
        k("s_lshr_b32 s13, s2, 3")
        k("s_add_u32 s3, s12, s13")
    else:
        k("s_mov_b32 s3, s2")
    k(f"s_and_b32 s12, s3, {ntm - 1}")
    k("v_readfirstlane_b32 s14, v1")
    k(f"s_lshr_b32 s13, s3, {lgm}")
    k("v_lshrrev_b32 v4, 4, v2")
    k("v_and_b32 v4, 1, v4")
    k("v_lshlrev_b32 v4, 2, v4")
    k("v_and_b32 v5, 7, v2")
    k("v_xor_b32 v19, v4, v5")
    k("v_lshrrev_b32 v3, 3, v2")
    k(f"v_mul_u32_u24 v4, {WRB}, v3")
    k("v_lshl_add_u32 v52, v19, 4, v4")
    k(f"v_add_u32 v53, {8 * WRB - 1024}, v52")
    VD = 6
    if mode == 1:
        k(f"v_mul_u32_u24 v4, {HTP}, v3")
        k("v_lshl_add_u32 v4, v19, 4, v4")
        for i in range(4):
            k(f"v_add_u32 v{VD+i}, {i * 8 * HTP - i * 1024}, v4")
    else:
        k(f"s_movk_i32 s15, {RB}")
        k("v_mul_lo_u32 v3, v3, s15")
        k("v_and_b32 v4, 7, v2")
        k("v_lshrrev_b32 v5, 4, v2")
        k("v_xor_b32 v4, v4, v5")
        k("v_xor_b32 v5, 4, v4")
        k("v_lshl_add_u32 v4, v4, 4, v3")
        k("v_lshl_add_u32 v5, v5, 4, v3")
        for i in range(4):
            k(f"v_add_u32 v{VD+i}, {i * 8 * RB - i * 1024}, v{4 + (i & 1)}")
    k("s_waitcnt lgkmcnt(0)")
    for x in t:
        srd_fin(k, x)
    if mode == 1:
        k("s_lshl_b32 s16, s12, 9")
        k("s_lshr_b32 s17, s14, 1")
        k("s_lshl_b32 s17, s17, 7")
        k("s_add_u32 s16, s16, s17")
        k("s_and_b32 s17, s14, 1")
        k(f"s_mul_i32 s17, s17, {32*HTP}")
        k("s_add_u32 s16, s16, s17")
        k(f"s_add_u32 s16, s16, {WS_HT}")
        k("s_lshr_b32 s18, s14, 2")
        k("s_cmp_eq_u32 s18, 0")
        k("s_cselect_b32 s44, s44, s48")
        k("s_cselect_b32 s45, s45, s49")
        k("s_and_b32 s18, s14, 3")
        k(f"s_mul_i32 s17, s18, {16 * WRB}")
        k("s_lshl_b32 s18, s13, 7")
        k("s_add_u32 s17, s17, s18")
        XADV = 64 * HTP
    else:
        k(f"s_mul_i32 s16, s12, {TX}")
        k("s_lshl_b32 s17, s14, 5")
        k("s_add_u32 s16, s16, s17")
        k("s_mul_i32 s16, s16, s15")
        k(f"s_add_u32 s16, s16, {WS_HA}")
        k(f"s_mul_i32 s17, s14, {16 * WRB}")
        k("s_lshl_b32 s18, s13, 7")
        k("s_add_u32 s17, s17, s18")
        XADV = 128
    k("s_lshl_b32 s19, s14, 12")
    k("s_lshl_b32 s20, s14, 11")
    k(f"s_add_u32 s20, s20, {XT_BYTES}")

    def issue_stage(st):
        so = st * STAGE
        k(f"s_add_u32 m0, s19, {so}")
        k("s_nop 0")
        for i in range(4):
            if 'nodma' not in EXP: k(f"buffer_load_dwordx4 v{VD+i}, s[4:7], s16 offen offset:{i*1024} lds")
        k(f"s_add_u32 m0, s20, {so}")
        k(f"s_add_u32 s16, s16, {XADV}")
        for i in range(NWI):
            if 'nodma' not in EXP: k(f"buffer_load_dwordx4 v{52+i}, s[44:47], s17 offen offset:{i*1024} lds")
        k(f"s_add_u32 s17, s17, {64 * WRB}")

    for st in range(NS - 1):
        issue_stage(st)
    k("v_and_b32 v10, 31, v2")
    k("v_lshrrev_b32 v11, 5, v2")
    if mode == 1:
        k("v_and_b32 v12, 3, v1")
        k("v_lshrrev_b32 v13, 2, v1")
    else:
        k("v_and_b32 v12, 1, v1")
        k("v_lshrrev_b32 v13, 1, v1")
    k("v_and_b32 v14, 15, v2")
    k("v_lshrrev_b32 v14, 2, v14")
    k("v_lshl_add_u32 v14, v11, 3, v14")
    k("v_lshlrev_b32 v14, 7, v14")
    k("v_lshrrev_b32 v3, 4, v2")
    k("v_and_b32 v3, 1, v3")
    k("v_lshlrev_b32 v3, 1, v3")
    k("v_and_b32 v4, 3, v2")
    k("v_lshrrev_b32 v4, 1, v4")
    k("v_add_u32 v3, v3, v4")
    k("v_lshrrev_b32 v4, 3, v2")
    k("v_and_b32 v4, 1, v4")
    k("v_lshlrev_b32 v4, 2, v4")
    k("v_xor_b32 v3, v3, v4")
    k("v_lshl_add_u32 v14, v3, 4, v14")
    k("v_and_b32 v4, 1, v2")
    k("v_lshl_add_u32 v14, v4, 3, v14")
    k("v_lshlrev_b32 v3, 6, v13")
    k("v_xor_b32 v16, v3, v14")
    k(f"v_add_u32 v16, {XT_BYTES}, v16")
    SA = 20
    SS = 8 if mode == 1 else 5
    if mode == 1:
        k("v_lshl_add_u32 v15, v12, 13, v14")
        for st in range(NS):
            k(f"v_add_u32 v{SA+SS*st}, {st*STAGE}, v15")
            k(f"v_xor_b32 v{SA+SS*st+1}, 64, v{SA+SS*st}")
            k(f"v_add_u32 v{SA+SS*st+4}, {st*STAGE}, v16")
    else:
        k("v_lshrrev_b32 v3, 1, v10")
        k("v_and_b32 v3, 7, v3")
        k("v_xor_b32 v3, v3, v11")
        k("v_lshlrev_b32 v3, 4, v3")
        k("v_lshl_add_u32 v15, v12, 6, v10")
        k("v_lshl_add_u32 v15, v15, 7, v3")
        for st in range(NS):
            for kk in range(4):
                k(f"v_xor_b32 v{SA+SS*st+kk}, {32*kk}, v15")
                if st:
                    k(f"v_add_u32 v{SA+SS*st+kk}, {st*STAGE}, v{SA+SS*st+kk}")
            k(f"v_add_u32 v{SA+SS*st+4}, {st*STAGE}, v16")
    FR = 56
    ACC = 120
    HR = 184
    nacc = NWF * 2
    for r in range(nacc * 16):
        k(f"v_mov_b32 v{ACC+r}, 0")
    k(f"s_mul_i32 s22, s12, {TX}")
    k("v_lshl_add_u32 v17, v12, 6, v10")
    k("v_add_u32 v17, s22, v17")
    k("s_lshl_b32 s22, s13, 6")
    k("v_lshlrev_b32 v18, 5, v13")
    k("v_lshl_add_u32 v18, v11, 2, v18")
    k("v_add_u32 v18, s22, v18")
    nextra = 0
    if mode == 2:
        k(f"v_mul_u32_u24 v3, {HTP}, v18")
        k("v_lshl_add_u32 v3, v17, 1, v3")
        for rq in range(4):
            for e in range(4):
                k(f"s_mov_b32 s27, {WS_HT + (8*rq+e)*HTP}")
                for xi in range(2):
                    k(f"buffer_load_ushort v{HR + xi*16 + 4*rq + e}, v3, s[4:7], s27 offen offset:{xi*64}")
        nextra = 32
    else:
        for r in range(4):
            k(f"v_mov_b32 v{HR+4+r}, 0x3f803f80")
        for r in range(32):
            k(f"v_mov_b32 v{224+r}, 0")
        k("v_lshlrev_b32 v3, 2, v18")
        k(f"s_mov_b32 s27, {WS_CS}")
        k(f"s_mov_b32 s28, {WS_CS + F*4}")
        for wi in range(2):
            for rq in range(4):
                r = 192 + 16 * wi + 4 * rq
                k(f"buffer_load_dwordx4 v[{r}:{r+3}], v3, s[4:7], s{27+wi} offen offset:{rq*32}")
        nextra = 8
        k("s_lshr_b32 s31, s14, 2")
    k(f"s_movk_i32 s26, {F*2 if mode == 1 else D*2}")
    k("v_mul_lo_u32 v17, v17, s26")
    k("v_lshl_add_u32 v17, v18, 1, v17")

    def reads(st, kk):
        b = FR + 16 * kk
        if 'noread' in EXP: return
        for wi in range(NWF):
            for hh in range(2):
                k(f"ds_read_b64_tr_b16 v[{b+4*wi+2*hh}:{b+4*wi+2*hh+1}], v{SA+SS*st+4} offset:{wi*8192 + kk*2048 + hh*512}")
        for xi in range(2):
            if mode == 1:
                for hh in range(2):
                    k(f"ds_read_b64_tr_b16 v[{b+8+4*xi+2*hh}:{b+8+4*xi+2*hh+1}], v{SA+SS*st+xi} offset:{kk*2048 + hh*512}")
            else:
                k(f"ds_read_b128 v[{b+8+4*xi}:{b+8+4*xi+3}], v{SA+SS*st+kk} offset:{xi*4096}")

    def mfmas(kk):
        b = FR + 16 * kk
        for wi in range(NWF):
            for xi in range(2):
                a = ACC + (wi * 2 + xi) * 16
                k(f"v_mfma_f32_32x32x16_bf16 v[{a}:{a+15}], v[{b+4*wi}:{b+4*wi+3}], v[{b+8+4*xi}:{b+8+4*xi+3}], v[{a}:{a+15}]")
        if mode == 1 and 'nostat' not in EXP:
            k("s_cmp_eq_u32 s31, 0")
            k(f"s_cbranch_scc0 {k.L('st1_%d' % cnt[0])}")
            k(f"v_mfma_f32_32x32x16_bf16 v[224:239], v[{HR+4}:{HR+7}], v[{b+8}:{b+11}], v[224:239]")
            k(f"v_mfma_f32_32x32x16_bf16 v[240:255], v[{b+8}:{b+11}], v[{b+8}:{b+11}], v[240:255]")
            k(f"s_branch {k.L('st2_%d' % cnt[0])}")
            k.label('st1_%d' % cnt[0])
            k(f"v_mfma_f32_32x32x16_bf16 v[224:239], v[{HR+4}:{HR+7}], v[{b+12}:{b+15}], v[224:239]")
            k(f"v_mfma_f32_32x32x16_bf16 v[240:255], v[{b+12}:{b+15}], v[{b+12}:{b+15}], v[240:255]")
            k.label('st2_%d' % cnt[0])
            cnt[0] += 1
    cnt = [0]
    nrd = 2 * NWF + (4 if mode == 1 else 2)
    W3, W2, W1 = min(15, 3 * nrd), min(15, 2 * nrd), min(15, nrd)

    def body(st):
        reads(st, 2)
        reads(st, 3)
        k(f"s_waitcnt lgkmcnt({W3})")
        mfmas(0)
        k(f"s_waitcnt lgkmcnt({W2})")
        mfmas(1)
        k(f"s_waitcnt vmcnt({(NS - 3) * LPW})")
        k("s_barrier")
        issue_stage((st + NS - 1) % NS)
        reads((st + 1) % NS, 0)
        reads((st + 1) % NS, 1)
        k(f"s_waitcnt lgkmcnt({W3})")
        mfmas(2)
        k(f"s_waitcnt lgkmcnt({W2})")
        mfmas(3)

    k(f"s_waitcnt vmcnt({min(63, (NS - 2) * LPW + nextra)})")
    k("s_barrier")
    if 'stamp' in EXP:
        k("s_memtime s[62:63]")
    reads(0, 0)
    reads(0, 1)
    T = nk - 1
    P = T % NS
    for i in range(P):
        body(i % NS)
    k(f"s_mov_b32 s39, {T // NS}")
    k.label("loop")
    for j in range(NS):
        body((P + j) % NS)
    k("s_sub_u32 s39, s39, 1")
    k("s_cmp_lg_u32 s39, 0")
    k(f"s_cbranch_scc1 {k.L('loop')}")
    st = T % NS
    reads(st, 2)
    reads(st, 3)
    k(f"s_waitcnt lgkmcnt({W3})")
    mfmas(0)
    k(f"s_waitcnt lgkmcnt({W2})")
    mfmas(1)
    k(f"s_waitcnt lgkmcnt({W1})")
    mfmas(2)
    k("s_waitcnt lgkmcnt(0)")
    mfmas(3)
    if 'stamp' in EXP:
        k("s_memtime s[64:65]")
    k("s_mov_b32 s25, 0xffff0000")
    if mode == 1:
        k("v_lshrrev_b32 v3, 3, v10")
        k("v_and_b32 v4, 3, v10")
        k("v_lshl_add_u32 v3, v3, 2, v4")
        k("s_nop 7")
        k("s_nop 1")
        k(f"v_mov_b32 v{HR+1}, v240")
        for r in range(1, 16):
            k(f"v_cmp_eq_u32 vcc, {r}, v3")
            k("s_nop 1")
            k(f"v_cndmask_b32 v{HR+1}, v{HR+1}, v{240+r}, vcc")
        k("v_xor_b32 v3, 32, v2")
        k("v_lshlrev_b32 v3, 2, v3")
        k(f"ds_bpermute_b32 v56, v3, v{HR+1}")
        k("v_lshrrev_b32 v4, 2, v10")
        k("v_and_b32 v4, 1, v4")
        k("v_cmp_eq_u32 vcc, v4, v11")
        k(f"v_mov_b32 v{HR}, v224")
        k("s_waitcnt lgkmcnt(0)")
        k(f"v_cndmask_b32 v{HR+1}, v56, v{HR+1}, vcc")
        k("s_waitcnt vmcnt(0)")
        k("s_barrier")
        k("v_lshl_add_u32 v3, v12, 1, v13")
        k("v_lshl_add_u32 v3, v3, 5, v10")
        k("v_lshlrev_b32 v3, 3, v3")
        k(f"ds_write_b64 v3, v[{HR}:{HR+1}]")
        k("s_waitcnt lgkmcnt(0)")
        k("s_barrier")
        k("v_lshl_add_u32 v3, v12, 6, v10")
        k("v_lshlrev_b32 v3, 3, v3")
        k("ds_read_b64 v[56:57], v3")
        k("ds_read_b64 v[58:59], v3 offset:256")
        k("s_waitcnt lgkmcnt(0)")
        k(f"v_mov_b32 v{HR}, v56")
        k(f"v_mov_b32 v{HR+1}, v58")
        k(f"v_mov_b32 v{HR+2}, v57")
        k(f"v_mov_b32 v{HR+3}, v59")
        k("s_mov_b32 s40, 0x3acccccd")
        for xi in range(2):
            k(f"v_mul_f32 v5, s40, v{HR+xi}")
            k(f"v_mul_f32 v6, s40, v{HR+2+xi}")
            k("v_fma_f32 v6, -v5, v5, v6")
            k("v_max_f32 v6, 0, v6")
            k("v_cvt_pk_bf16_f32 v6, v6, v5")
            k(f"v_and_b32 v{HR+xi}, s25, v6")
            k("v_lshlrev_b32 v6, 16, v6")
            k("v_add_f32 v6, 0x3727c5ac, v6")
            k("v_cvt_pk_bf16_f32 v6, v6, v6")
            k("v_lshlrev_b32 v6, 16, v6")
            k("v_sqrt_f32 v6, v6")
            k("s_nop 0")
            k("v_cvt_pk_bf16_f32 v6, v6, v6")
            k("v_lshlrev_b32 v6, 16, v6")
            k(f"v_rcp_f32 v{HR+2+xi}, v6")
        k(f"s_mov_b32 s27, {WS_HA}")
        k(f"s_add_u32 s28, s27, {32*F*2}")
        k("v_mov_b32 v19, 0x3d372713")
        k("v_mov_b32 v20, 0x40135761")
        k("s_waitcnt lgkmcnt(0)")
        for xi in range(2):
            for rq in range(4):
                for e in range(4):
                    ga = ACC + xi * 16 + 4 * rq + e
                    ua = ACC + (2 + xi) * 16 + 4 * rq + e
                    t0 = 96 + 4 * e
                    k(f"v_fma_f32 v{ga}, -v{HR+xi}, v{192+4*rq+e}, v{ga}")
                    k(f"v_fma_f32 v{ua}, -v{HR+xi}, v{208+4*rq+e}, v{ua}")
                    k(f"v_mul_f32 v{ga}, v{ga}, v{HR+2+xi}")
                    k(f"v_mul_f32 v{ua}, v{ua}, v{HR+2+xi}")
                    k(f"v_cvt_pk_bf16_f32 v{t0}, v{ga}, v{ua}")
                    k(f"v_and_b32 v{t0+1}, s25, v{t0}")
                    k(f"v_lshlrev_b32 v{t0}, 16, v{t0}")
                    k(f"v_mul_f32 v{t0+2}, v{t0}, v{t0}")
                    k(f"v_mul_f32 v{t0+2}, v{t0+2}, v19")
                    k(f"v_fma_f32 v{t0+2}, v{t0+2}, v{t0}, v{t0}")
                    k(f"v_mul_f32 v{t0+2}, v{t0+2}, v20")
                for e in range(4):
                    k(f"v_exp_f32 v{98+4*e}, v{98+4*e}")
                k("s_nop 0")
                for e in range(4):
                    k(f"v_add_f32 v{98+4*e}, 1.0, v{98+4*e}")
                for e in range(4):
                    k(f"v_rcp_f32 v{98+4*e}, v{98+4*e}")
                k("s_nop 0")
                for e in range(4):
                    t0 = 96 + 4 * e
                    k(f"v_fma_f32 v{t0+2}, -v{t0}, v{t0+2}, v{t0}")
                    k(f"v_cvt_pk_bf16_f32 v{t0+2}, v{t0+2}, v{t0+2}")
                    k(f"v_lshlrev_b32 v{t0+2}, 16, v{t0+2}")
                    k(f"v_mul_f32 v{t0+3}, v{t0+2}, v{t0+1}")
                o = 112 + 2 * ((xi * 4 + rq) & 3)
                k(f"v_cvt_pk_bf16_f32 v{o}, v99, v103")
                k(f"v_cvt_pk_bf16_f32 v{o+1}, v107, v111")
                k(f"buffer_store_dwordx2 v[{o}:{o+1}], v17, s[4:7], s{27+xi} offen offset:{rq*16}")
    else:
        k("s_mov_b32 s29, 0")
        k(f"s_mov_b32 s30, {32*1280}")
        k("s_nop 7")
        k("s_nop 1")
        k("s_waitcnt vmcnt(0)")
        for xi in range(2):
            for rq in range(4):
                a = ACC + xi * 16 + 4 * rq
                h = HR + xi * 16 + 4 * rq
                o = 56 + 2 * (xi * 4 + rq)
                for p in range(2):
                    k(f"v_cvt_pk_bf16_f32 v22, v{a+2*p}, v{a+2*p+1}")
                    k("v_lshlrev_b32 v24, 16, v22")
                    k("v_and_b32 v25, s25, v22")
                    k(f"v_lshlrev_b32 v26, 16, v{h+2*p}")
                    k(f"v_lshlrev_b32 v27, 16, v{h+2*p+1}")
                    k("v_add_f32 v24, v24, v26")
                    k("v_add_f32 v25, v25, v27")
                    k(f"v_cvt_pk_bf16_f32 v{o+p}, v24, v25")
                k(f"buffer_store_dwordx2 v[{o}:{o+1}], v17, s[8:11], s{29+xi} offen offset:{rq*16}")
    if 'stamp' in EXP:
        k("s_waitcnt vmcnt(0)")
        k("s_memtime s[66:67]")
        k("s_load_dwordx2 s[68:69], s[0:1], 96")
        k("s_waitcnt lgkmcnt(0)")
        k("s_and_b32 s69, s69, 0xffff")
        k("s_movk_i32 s70, 256")
        k("s_mov_b32 s71, 0x20000")
        k("s_sub_u32 s62, s62, s60")
        k("s_sub_u32 s64, s64, s60")
        k("s_sub_u32 s66, s66, s60")
        k("v_mov_b32 v1, s62")
        k("v_mov_b32 v2, s64")
        k("v_mov_b32 v3, s66")
        k("v_mov_b32 v0, 0")
        k("s_cmp_lg_u32 s2, 37")
        k(f"s_cbranch_scc1 {k.L('end')}")
        k("buffer_store_dwordx4 v[0:3], v0, s[68:71], 0 offen")
    k.label("end")
    k("s_endpgm")
    return k, NS * STAGE, nwg, NW * 64
```

```python
import os
EXP = os.environ.get('EXP', '')
from gen import K, srd, srd_fin, KARG, WS_SIZE, WS_HT, WS_HA, WS_CS, L, D, F
HTP = 4224


def gen_gemm1(name):
    NS = 4
    nk = 20
    nwg = 16 * 27
    WRB = F * 2
    SUB = 4096
    STAGE = 4 * SUB
    LPW = 4
    k = K(name, 240)
    k(f"s_cmp_ge_u32 s2, {nwg}")
    k(f"s_cbranch_scc1 {k.L('end')}")
    t = [srd(k, 4, KARG['ws'], WS_SIZE), srd(k, 44, KARG['wg'], D * F * 2), srd(k, 48, KARG['wu'], D * F * 2)]
    if 'stamp' in EXP:
        k("s_memtime s[60:61]")
    if 'wgtg' in EXP:
        k("s_memrealtime s[60:61]")
    k("v_lshrrev_b32 v1, 6, v0")
    k("v_and_b32 v2, 63, v0")
    k("s_and_b32 s12, s2, 7")
    k("s_mul_i32 s12, s12, 54")
    k("s_lshr_b32 s13, s2, 3")
    k("s_add_u32 s3, s12, s13")
    k("s_and_b32 s12, s3, 15")
    k("v_readfirstlane_b32 s14, v1")
    k("s_lshr_b32 s13, s3, 4")
    k("v_lshrrev_b32 v4, 4, v2")
    k("v_and_b32 v4, 1, v4")
    k("v_lshlrev_b32 v4, 2, v4")
    k("v_and_b32 v5, 7, v2")
    k("v_xor_b32 v19, v4, v5")
    k("v_lshrrev_b32 v3, 3, v2")
    k(f"v_mul_u32_u24 v4, {WRB}, v3")
    k("v_lshl_add_u32 v8, v19, 4, v4")
    k(f"v_add_u32 v9, {8 * WRB - 1024}, v8")
    k(f"v_mul_u32_u24 v4, {HTP}, v3")
    k("v_lshl_add_u32 v6, v19, 4, v4")
    k(f"v_add_u32 v7, {8 * HTP - 1024}, v6")
    k("s_waitcnt lgkmcnt(0)")
    for x in t:
        srd_fin(k, x)
    k("s_lshr_b32 s17, s14, 1")
    k("s_and_b32 s18, s14, 1")
    k("s_lshl_b32 s16, s12, 8")
    k("s_lshl_b32 s15, s17, 7")
    k("s_add_u32 s16, s16, s15")
    k(f"s_mul_i32 s15, s18, {16 * HTP}")
    k("s_add_u32 s16, s16, s15")
    k(f"s_add_u32 s16, s16, {WS_HT}")
    k("s_cmp_eq_u32 s17, 0")
    k("s_cselect_b32 s44, s44, s48")
    k("s_cselect_b32 s45, s45, s49")
    k(f"s_mul_i32 s17, s18, {16 * WRB}")
    k("s_lshl_b32 s15, s13, 7")
    k("s_add_u32 s17, s17, s15")
    k("s_lshl_b32 s19, s14, 11")
    k(f"s_add_u32 s20, s19, {2 * SUB}")

    def issue_stage(st):
        so = st * STAGE
        k(f"s_add_u32 m0, s19, {so}")
        k("s_nop 0")
        for i in range(2):
            k(f"buffer_load_dwordx4 v{6+i}, s[4:7], s16 offen offset:{i*1024} lds")
        k(f"s_add_u32 m0, s20, {so}")
        k(f"s_add_u32 s16, s16, {32 * HTP}")
        for i in range(2):
            k(f"buffer_load_dwordx4 v{8+i}, s[44:47], s17 offen offset:{i*1024} lds")
        k(f"s_add_u32 s17, s17, {32 * WRB}")

    for st in range(NS - 1):
        issue_stage(st)
    k("v_and_b32 v10, 31, v2")
    k("v_lshrrev_b32 v11, 5, v2")
    k("v_and_b32 v12, 1, v1")
    k("v_lshrrev_b32 v13, 1, v1")
    k("v_and_b32 v14, 15, v2")
    k("v_lshrrev_b32 v14, 2, v14")
    k("v_lshl_add_u32 v14, v11, 3, v14")
    k("v_lshlrev_b32 v14, 7, v14")
    k("v_lshrrev_b32 v3, 4, v2")
    k("v_and_b32 v3, 1, v3")
    k("v_lshlrev_b32 v3, 1, v3")
    k("v_and_b32 v4, 3, v2")
    k("v_lshrrev_b32 v4, 1, v4")
    k("v_add_u32 v3, v3, v4")
    k("v_lshrrev_b32 v4, 3, v2")
    k("v_and_b32 v4, 1, v4")
    k("v_lshlrev_b32 v4, 2, v4")
    k("v_xor_b32 v3, v3, v4")
    k("v_lshl_add_u32 v14, v3, 4, v14")
    k("v_and_b32 v4, 1, v2")
    k("v_lshl_add_u32 v14, v4, 3, v14")
    k("v_lshlrev_b32 v3, 6, v13")
    k("v_xor_b32 v22, v3, v14")
    k(f"v_add_u32 v22, {2 * SUB}, v22")
    k("v_lshl_add_u32 v20, v12, 12, v14")
    k("v_xor_b32 v21, 64, v20")
    FR = 24
    ACC = 56
    HR = 120
    S1, S2 = 128, 144
    CS = 160
    for r in range(64):
        k(f"v_mov_b32 v{ACC+r}, 0")
    for r in range(32):
        k(f"v_mov_b32 v{S1+r}, 0")
    for r in range(4):
        k(f"v_mov_b32 v{HR+4+r}, 0x3f803f80")
    k("s_lshl_b32 s22, s12, 7")
    k("v_lshl_add_u32 v17, v12, 6, v10")
    k("v_add_u32 v17, s22, v17")
    k("s_lshl_b32 s22, s13, 6")
    k("v_lshlrev_b32 v18, 5, v13")
    k("v_lshl_add_u32 v18, v11, 2, v18")
    k("v_add_u32 v18, s22, v18")
    k("v_lshlrev_b32 v3, 2, v18")
    k(f"s_mov_b32 s27, {WS_CS}")
    k(f"s_mov_b32 s28, {WS_CS + F*4}")
    for wi in range(2):
        for rq in range(4):
            r = CS + 16 * wi + 4 * rq
            k(f"buffer_load_dwordx4 v[{r}:{r+3}], v3, s[4:7], s{27+wi} offen offset:{rq*32}")
    k("s_lshr_b32 s31, s14, 1")
    k(f"s_movk_i32 s26, {F*2}")
    k("v_mul_lo_u32 v17, v17, s26")
    k("v_lshl_add_u32 v17, v18, 1, v17")
    cnt = [0]

    def reads(st, kk):
        b = FR + 16 * kk
        so = st * STAGE + kk * 2048
        for wi in range(2):
            for hh in range(2):
                k(f"ds_read_b64_tr_b16 v[{b+4*wi+2*hh}:{b+4*wi+2*hh+1}], v22 offset:{so + wi*SUB + hh*512}")
        for xi in range(2):
            for hh in range(2):
                k(f"ds_read_b64_tr_b16 v[{b+8+4*xi+2*hh}:{b+8+4*xi+2*hh+1}], v{20+xi} offset:{so + hh*512}")

    def mfmas(kk):
        b = FR + 16 * kk
        for wi in range(2):
            for xi in range(2):
                a = ACC + (wi * 2 + xi) * 16
                k(f"v_mfma_f32_32x32x16_bf16 v[{a}:{a+15}], v[{b+4*wi}:{b+4*wi+3}], v[{b+8+4*xi}:{b+8+4*xi+3}], v[{a}:{a+15}]")
        k("s_cmp_eq_u32 s31, 0")
        k(f"s_cbranch_scc0 {k.L('st1_%d' % cnt[0])}")
        for i in range(4):
            k(f"v_dot2c_f32_bf16 v{S1}, v{b+8+i}, v{HR+4}")
            k(f"v_dot2c_f32_bf16 v{S1+1}, v{b+8+i}, v{b+8+i}")
        k(f"s_branch {k.L('st2_%d' % cnt[0])}")
        k.label('st1_%d' % cnt[0])
        for i in range(4):
            k(f"v_dot2c_f32_bf16 v{S1}, v{b+12+i}, v{HR+4}")
            k(f"v_dot2c_f32_bf16 v{S1+1}, v{b+12+i}, v{b+12+i}")
        k.label('st2_%d' % cnt[0])
        cnt[0] += 1

    def body(st):
        reads(st, 1)
        k("s_waitcnt lgkmcnt(8)")
        mfmas(0)
        k(f"s_waitcnt vmcnt({(NS - 3) * LPW})")
        k("s_barrier")
        issue_stage((st + NS - 1) % NS)
        reads((st + 1) % NS, 0)
        k("s_waitcnt lgkmcnt(8)")
        mfmas(1)

    k(f"s_waitcnt vmcnt({(NS - 2) * LPW + 8})")
    k("s_barrier")
    if 'stamp' in EXP:
        k("s_memtime s[62:63]")
    reads(0, 0)
    T = nk - 1
    P = T % NS
    for i in range(P):
        body(i % NS)
    k(f"s_mov_b32 s39, {T // NS}")
    k.label("loop")
    for j in range(NS):
        body((P + j) % NS)
    k("s_sub_u32 s39, s39, 1")
    k("s_cmp_lg_u32 s39, 0")
    k(f"s_cbranch_scc1 {k.L('loop')}")
    st = T % NS
    reads(st, 1)
    k("s_waitcnt lgkmcnt(8)")
    mfmas(0)
    k("s_waitcnt lgkmcnt(0)")
    mfmas(1)
    if 'stamp' in EXP:
        k("s_memtime s[64:65]")
    k("s_mov_b32 s25, 0xffff0000")
    k("v_xor_b32 v3, 32, v2")
    k("v_lshlrev_b32 v3, 2, v3")
    k("s_nop 2")
    k(f"ds_bpermute_b32 v24, v3, v{S1}")
    k(f"ds_bpermute_b32 v25, v3, v{S1+1}")
    k("s_waitcnt lgkmcnt(0)")
    k(f"v_add_f32 v{HR}, v{S1}, v24")
    k(f"v_add_f32 v{HR+1}, v{S1+1}, v25")
    k("s_waitcnt vmcnt(0)")
    k("s_barrier")
    k("v_lshl_add_u32 v3, v12, 1, v13")
    k("v_lshl_add_u32 v3, v3, 5, v10")
    k("v_lshlrev_b32 v3, 3, v3")
    k(f"ds_write_b64 v3, v[{HR}:{HR+1}]")
    k("s_waitcnt lgkmcnt(0)")
    k("s_barrier")
    k("v_lshl_add_u32 v3, v12, 6, v10")
    k("v_lshlrev_b32 v3, 3, v3")
    k("ds_read_b64 v[24:25], v3")
    k("ds_read_b64 v[26:27], v3 offset:256")
    k("s_mov_b32 s40, 0x3acccccd")
    k("s_waitcnt lgkmcnt(0)")
    for xi in range(2):
        k(f"v_mul_f32 v5, s40, v{24+2*xi}")
        k(f"v_mul_f32 v6, s40, v{25+2*xi}")
        k("v_fma_f32 v6, -v5, v5, v6")
        k("v_max_f32 v6, 0, v6")
        k("v_cvt_pk_bf16_f32 v6, v6, v5")
        k(f"v_and_b32 v{HR+xi}, s25, v6")
        k("v_lshlrev_b32 v6, 16, v6")
        k("v_add_f32 v6, 0x3727c5ac, v6")
        k("v_cvt_pk_bf16_f32 v6, v6, v6")
        k("v_lshlrev_b32 v6, 16, v6")
        k("v_sqrt_f32 v6, v6")
        k("s_nop 0")
        k("v_cvt_pk_bf16_f32 v6, v6, v6")
        k("v_lshlrev_b32 v6, 16, v6")
        k(f"v_rcp_f32 v{HR+2+xi}, v6")
    k(f"s_mov_b32 s27, {WS_HA}")
    k(f"s_add_u32 s28, s27, {32*F*2}")
    k("v_mov_b32 v19, 0x3d372713")
    k("v_mov_b32 v20, 0x40135761")
    T0 = 192
    for xi in range(2):
        k(f"v_sub_f32 v{216+2*xi}, 0, v{HR+xi}")
        k(f"v_sub_f32 v{217+2*xi}, 0, v{HR+xi}")
        k(f"v_mov_b32 v{220+2*xi}, v{HR+2+xi}")
        k(f"v_mov_b32 v{221+2*xi}, v{HR+2+xi}")
    k("v_mov_b32 v224, 0x3d372713")
    k("v_mov_b32 v225, 0x3d372713")
    k("v_mov_b32 v226, 0x40135761")
    k("v_mov_b32 v227, 0x40135761")
    for xi in range(2):
        nm = f"v[{216+2*xi}:{217+2*xi}]"
        rsp = f"v[{220+2*xi}:{221+2*xi}]"
        for rq in range(4):
            for p2 in range(2):
                ga = ACC + xi * 16 + 4 * rq + 2 * p2
                ua = ACC + (2 + xi) * 16 + 4 * rq + 2 * p2
                cg = CS + 4 * rq + 2 * p2
                cu = CS + 16 + 4 * rq + 2 * p2
                k(f"v_pk_fma_f32 v[{ga}:{ga+1}], {nm}, v[{cg}:{cg+1}], v[{ga}:{ga+1}]")
                k(f"v_pk_fma_f32 v[{ua}:{ua+1}], {nm}, v[{cu}:{cu+1}], v[{ua}:{ua+1}]")
                k(f"v_pk_mul_f32 v[{ga}:{ga+1}], v[{ga}:{ga+1}], {rsp}")
                k(f"v_pk_mul_f32 v[{ua}:{ua+1}], v[{ua}:{ua+1}], {rsp}")
                g0 = T0 + 2 * p2
                u0 = T0 + 4 + 2 * p2
                z0 = T0 + 8 + 2 * p2
                k(f"v_cvt_pk_bf16_f32 v{z0}, v{ga}, v{ga+1}")
                k(f"v_cvt_pk_bf16_f32 v{z0+1}, v{ua}, v{ua+1}")
                k(f"v_lshlrev_b32 v{g0}, 16, v{z0}")
                k(f"v_and_b32 v{g0+1}, s25, v{z0}")
                k(f"v_lshlrev_b32 v{u0}, 16, v{z0+1}")
                k(f"v_and_b32 v{u0+1}, s25, v{z0+1}")
                k(f"v_pk_mul_f32 v[{z0}:{z0+1}], v[{g0}:{g0+1}], v[{g0}:{g0+1}]")
                k(f"v_pk_mul_f32 v[{z0}:{z0+1}], v[{z0}:{z0+1}], v[224:225]")
                k(f"v_pk_fma_f32 v[{z0}:{z0+1}], v[{z0}:{z0+1}], v[{g0}:{g0+1}], v[{g0}:{g0+1}]")
                k(f"v_pk_mul_f32 v[{z0}:{z0+1}], v[{z0}:{z0+1}], v[226:227]")
            for e in range(4):
                k(f"v_exp_f32 v{T0+8+e}, v{T0+8+e}")
            k("s_nop 0")
            for e in range(4):
                k(f"v_add_f32 v{T0+8+e}, 1.0, v{T0+8+e}")
            for e in range(4):
                k(f"v_rcp_f32 v{T0+8+e}, v{T0+8+e}")
            k("s_nop 0")
            o = 208 + 2 * ((xi * 4 + rq) & 3)
            for p2 in range(2):
                g0 = T0 + 2 * p2
                u0 = T0 + 4 + 2 * p2
                z0 = T0 + 8 + 2 * p2
                k(f"v_pk_fma_f32 v[{z0}:{z0+1}], v[{g0}:{g0+1}], v[{z0}:{z0+1}], v[{g0}:{g0+1}] neg_lo:[1,0,0] neg_hi:[1,0,0]")
                k(f"v_cvt_pk_bf16_f32 v{z0}, v{z0}, v{z0+1}")
                k(f"v_and_b32 v{z0+1}, s25, v{z0}")
                k(f"v_lshlrev_b32 v{z0}, 16, v{z0}")
                k(f"v_pk_mul_f32 v[{z0}:{z0+1}], v[{z0}:{z0+1}], v[{u0}:{u0+1}]")
                k(f"v_cvt_pk_bf16_f32 v{o+p2}, v{z0}, v{z0+1}")
            k(f"buffer_store_dwordx2 v[{o}:{o+1}], v17, s[4:7], s{27+xi} offen offset:{rq*16}")
    if 'stamp' in EXP:
        k("s_waitcnt vmcnt(0)")
        k("s_memtime s[66:67]")
        k("s_load_dwordx2 s[68:69], s[0:1], 96")
        k("s_waitcnt lgkmcnt(0)")
        k("s_and_b32 s69, s69, 0xffff")
        k("s_movk_i32 s70, 256")
        k("s_mov_b32 s71, 0x20000")
        k("s_sub_u32 s62, s62, s60")
        k("s_sub_u32 s64, s64, s60")
        k("s_sub_u32 s66, s66, s60")
        k("v_mov_b32 v1, s62")
        k("v_mov_b32 v2, s64")
        k("v_mov_b32 v3, s66")
        k("v_mov_b32 v0, 0")
        k("s_cmp_lg_u32 s2, 37")
        k(f"s_cbranch_scc1 {k.L('end')}")
        k("buffer_store_dwordx4 v[0:3], v0, s[68:71], 0 offen")
    if 'wgtg' in EXP:
        k("s_waitcnt vmcnt(0)")
        k("s_memrealtime s[62:63]")
        k("s_getreg_b32 s64, hwreg(HW_REG_HW_ID)")
        k("s_waitcnt lgkmcnt(0)")
        k("v_mov_b32 v0, s60")
        k("v_mov_b32 v1, s62")
        k("v_mov_b32 v2, s64")
        k("v_mov_b32 v3, 0")
        k("s_lshl_b32 s65, s2, 4")
        k("v_mov_b32 v4, s65")
        k("s_mov_b32 s66, 0x2c00000")
        k("buffer_store_dwordx4 v[0:3], v4, s[4:7], s66 offen")
    k.label("end")
    k("s_endpgm")
    return k, NS * STAGE, nwg, 256
```

```python
import os, struct
EXP = os.environ.get('EXP', '')
from gen import K, srd, srd_fin, KARG, WS_SIZE, WS_UT, WS_XT, WS_KB, WS_HT, WS_H, WS_HL, WS_WGT, WS_WUT, WS_WDT, WS_CS, L, D, N, F


def fbits(x):
    return "0x%08x" % struct.unpack("<I", struct.pack("<f", float(x)))[0]


HI = list(range(8)) + [256 + 2 * i for i in range(4)] + [512, 516, 768, 772] + [1024 + 256 * i for i in range(4)] + [2048]


def ln_core(k, VB, SUM, TMP, MEAN, RS, BP, NR=8):
    for i in range(NR):
        k(f"v_add_f32 v{SUM+i}, v{VB+i*10}, v{VB+i*10+1}")
        for e in range(2, 10):
            k(f"v_add_f32 v{SUM+i}, v{SUM+i}, v{VB+i*10+e}")

    def reduce8():
        for h in range(6):
            for i in range(NR):
                k(f"ds_bpermute_b32 v{TMP+i}, v{BP+h}, v{SUM+i}")
            k("s_waitcnt lgkmcnt(0)")
            for i in range(NR):
                k(f"v_add_f32 v{SUM+i}, v{SUM+i}, v{TMP+i}")
    reduce8()
    k("s_mov_b32 s40, 0x3acccccd")
    k("s_mov_b32 s41, 0xffff0000")
    for i in range(NR):
        k(f"v_mul_f32 v{MEAN+i}, s40, v{SUM+i}")
    for i in range(NR):
        k(f"v_sub_f32 v{TMP+i}, v{VB+i*10}, v{MEAN+i}")
        k(f"v_mul_f32 v{SUM+i}, v{TMP+i}, v{TMP+i}")
        for e in range(1, 10):
            k(f"v_sub_f32 v{TMP+i}, v{VB+i*10+e}, v{MEAN+i}")
            k(f"v_fmac_f32 v{SUM+i}, v{TMP+i}, v{TMP+i}")
    reduce8()
    for i in range(NR):
        k(f"v_mul_f32 v{TMP+i}, s40, v{SUM+i}")
        k(f"v_cvt_pk_bf16_f32 v{TMP+i}, v{TMP+i}, v{MEAN+i}")
        k(f"v_and_b32 v{MEAN+i}, s41, v{TMP+i}")
        k(f"v_lshlrev_b32 v{TMP+i}, 16, v{TMP+i}")
        k(f"v_add_f32 v{TMP+i}, 0x3727c5ac, v{TMP+i}")
        k(f"v_cvt_pk_bf16_f32 v{TMP+i}, v{TMP+i}, v{TMP+i}")
        k(f"v_lshlrev_b32 v{TMP+i}, 16, v{TMP+i}")
    for i in range(NR):
        k(f"v_sqrt_f32 v{TMP+i}, v{TMP+i}")
    k("s_nop 0")
    for i in range(NR):
        k(f"v_cvt_pk_bf16_f32 v{TMP+i}, v{TMP+i}, v{TMP+i}")
        k(f"v_lshlrev_b32 v{TMP+i}, 16, v{TMP+i}")
    for i in range(NR):
        k(f"v_rcp_f32 v{RS+i}, v{TMP+i}")
    k("s_nop 0")


def norm_pair(k, dst, a, ma, ra, b, mb, rb, t0, t1):
    k(f"v_sub_f32 v{t0}, v{a}, v{ma}")
    k(f"v_sub_f32 v{t1}, v{b}, v{mb}")
    k(f"v_cvt_pk_bf16_f32 v{t0}, v{t0}, v{t1}")
    k(f"v_and_b32 v{t1}, s41, v{t0}")
    k(f"v_lshlrev_b32 v{t0}, 16, v{t0}")
    k(f"v_mul_f32 v{t0}, v{t0}, v{ra}")
    k(f"v_mul_f32 v{t1}, v{t1}, v{rb}")
    k(f"v_cvt_pk_bf16_f32 v{dst}, v{t0}, v{t1}")


def bp_addrs(k, BP, lane):
    for h, m in enumerate([1, 2, 4, 8, 16, 32]):
        k(f"v_xor_b32 v{BP+h}, {m}, v{lane}")
        k(f"v_lshlrev_b32 v{BP+h}, 2, v{BP+h}")


SUM, TMP, MEAN, RS, BP, RAW = 16, 24, 32, 40, 48, 64
TSTR = 80


def ln_core_packed(k):
    SQ, TMP2 = 112, 120
    k("s_mov_b32 s40, 0x3acccccd")
    k("v_mov_b32 v6, 0x3f803f80")
    for i in range(8):
        k(f"v_mov_b32 v{SUM+i}, 0")
        k(f"v_mov_b32 v{SQ+i}, 0")
    for j in range(5):
        for i in range(8):
            r = RAW + i * 5 + j
            k(f"v_dot2c_f32_bf16 v{SUM+i}, v{r}, v6")
            k(f"v_dot2c_f32_bf16 v{SQ+i}, v{r}, v{r}")
    k("s_nop 2")
    for h in range(6):
        for i in range(8):
            k(f"ds_bpermute_b32 v{TMP+i}, v{BP+h}, v{SUM+i}")
        for i in range(8):
            k(f"ds_bpermute_b32 v{TMP2+i}, v{BP+h}, v{SQ+i}")
        k("s_waitcnt lgkmcnt(8)")
        for i in range(8):
            k(f"v_add_f32 v{SUM+i}, v{SUM+i}, v{TMP+i}")
        k("s_waitcnt lgkmcnt(0)")
        for i in range(8):
            k(f"v_add_f32 v{SQ+i}, v{SQ+i}, v{TMP2+i}")
    for i in range(8):
        k(f"v_mul_f32 v{MEAN+i}, s40, v{SUM+i}")
        k(f"v_mul_f32 v{TMP+i}, s40, v{SQ+i}")
        k(f"v_fma_f32 v{TMP+i}, -v{MEAN+i}, v{MEAN+i}, v{TMP+i}")
        k(f"v_max_f32 v{TMP+i}, 0, v{TMP+i}")
        k(f"v_cvt_pk_bf16_f32 v{TMP+i}, v{TMP+i}, v{MEAN+i}")
        k(f"v_and_b32 v{MEAN+i}, s41, v{TMP+i}")
        k(f"v_lshlrev_b32 v{TMP+i}, 16, v{TMP+i}")
        k(f"v_add_f32 v{TMP+i}, 0x3727c5ac, v{TMP+i}")
        k(f"v_cvt_pk_bf16_f32 v{TMP+i}, v{TMP+i}, v{TMP+i}")
        k(f"v_lshlrev_b32 v{TMP+i}, 16, v{TMP+i}")
    for i in range(8):
        k(f"v_sqrt_f32 v{TMP+i}, v{TMP+i}")
    k("s_nop 0")
    for i in range(8):
        k(f"v_cvt_pk_bf16_f32 v{TMP+i}, v{TMP+i}, v{TMP+i}")
        k(f"v_lshlrev_b32 v{TMP+i}, 16, v{TMP+i}")
    for i in range(8):
        k(f"v_rcp_f32 v{RS+i}, v{TMP+i}")
    k("s_nop 0")


def norm_raw(k, dst, r, i):
    k(f"v_lshlrev_b32 v6, 16, v{r}")
    k(f"v_and_b32 v7, s41, v{r}")
    k(f"v_sub_f32 v6, v6, v{MEAN+i}")
    k(f"v_sub_f32 v7, v7, v{MEAN+i}")
    k(f"v_cvt_pk_bf16_f32 v6, v6, v7")
    k(f"v_and_b32 v7, s41, v6")
    k(f"v_lshlrev_b32 v6, 16, v6")
    k(f"v_mul_f32 v6, v6, v{RS+i}")
    k(f"v_mul_f32 v7, v7, v{RS+i}")
    k(f"v_cvt_pk_bf16_f32 v{dst}, v6, v7")


def tile_out(k, src_regs_fn, ws_base):
    for (j0, j1) in [(0, 5)]:
        for j in range(j0, j1):
            for ip in range(4):
                r0, r1 = src_regs_fn(2 * ip, j), src_regs_fn(2 * ip + 1, j)
                k(f"v_and_b32 v6, 0xffff, v{r0}")
                k(f"v_lshl_or_b32 v{104+ip}, v{r1}, 16, v6")
                k(f"v_lshrrev_b32 v6, 16, v{r0}")
                k(f"v_and_or_b32 v{108+ip}, v{r1}, s41, v6")
            k(f"ds_write_b128 v8, v[104:107] offset:{(j-j0)*128*TSTR}")
            k(f"ds_write_b128 v8, v[108:111] offset:{(j-j0)*128*TSTR + TSTR}")
        k("s_waitcnt lgkmcnt(0)")
        k("s_barrier")
        for it in range(2 * (j1 - j0)):
            k(f"ds_read_b128 v[{104+4*(it%4)}:{107+4*(it%4)}], v9 offset:{it*64*TSTR}")
            k(f"s_mov_b32 s15, {ws_base + (2*j0+it)*64*4096}")
            k("s_waitcnt lgkmcnt(0)")
            k(f"buffer_store_dwordx4 v[{104+4*(it%4)}:{107+4*(it%4)}], v10, s[8:11], s15 offen")
        k("s_barrier")


def role_ln1(k):
    if 'noln1' in EXP:
        k("s_endpgm")
    k("v_and_b32 v1, 63, v0")
    k("v_lshrrev_b32 v2, 6, v0")
    k("s_lshl_b32 s3, s2, 5")
    k("v_lshlrev_b32 v4, 3, v2")
    k("v_add_u32 v4, s3, v4")
    k("s_movk_i32 s12, 1280")
    k("v_mul_lo_u32 v3, v4, s12")
    k("v_lshl_add_u32 v3, v1, 2, v3")
    for i in range(8):
        k(f"s_movk_i32 s13, {i*1280}")
        for j in range(5):
            k(f"buffer_load_dword v{RAW+i*5+j}, v3, s[4:7], s13 offen offset:{j*256}")
    bp_addrs(k, BP, 1)
    k("s_mov_b32 s41, 0xffff0000")
    k(f"v_mul_u32_u24 v8, {2*TSTR}, v1")
    k("v_lshl_add_u32 v8, v2, 4, v8")
    k("v_lshrrev_b32 v9, 2, v0")
    k("v_and_b32 v11, 3, v0")
    k("v_lshlrev_b32 v10, 12, v9")
    k("v_lshl_add_u32 v10, v11, 4, v10")
    k("s_lshl_b32 s3, s2, 6")
    k("v_add_u32 v10, s3, v10")
    k(f"v_mul_u32_u24 v9, {TSTR}, v9")
    k("v_lshl_add_u32 v9, v11, 4, v9")
    k("s_waitcnt vmcnt(0)")
    tile_out(k, lambda i, j: RAW + i * 5 + j, WS_XT)
    ln_core_packed(k)
    for i in range(8):
        for j in range(5):
            norm_raw(k, RAW + i * 5 + j, RAW + i * 5 + j, i)
    tile_out(k, lambda i, j: RAW + i * 5 + j, WS_UT)
    k("s_endpgm")


def role_transpose(k, tag, sreg, R, C, ws_dst, wg_reg):
    if 'notr' in EXP:
        k("s_endpgm")
    ntile_c = C // 64
    magic = (1 << 32) // ntile_c + 1
    k(f"s_mov_b32 s12, {magic}")
    k(f"s_mul_hi_u32 s13, s{wg_reg}, s12")
    k(f"s_mul_i32 s14, s13, {ntile_c}")
    k(f"s_sub_u32 s14, s{wg_reg}, s14")
    k("v_lshrrev_b32 v1, 2, v0")
    k("v_and_b32 v2, 3, v0")
    k("s_lshl_b32 s15, s13, 6")
    k("v_add_u32 v3, s15, v1")
    k(f"s_movk_i32 s16, {C*2}")
    k("v_mul_lo_u32 v3, v3, s16")
    k("s_lshl_b32 s17, s14, 7")
    k("v_lshl_add_u32 v4, v2, 5, s17")
    k("v_add_u32 v3, v3, v4")
    k(f"buffer_load_dwordx4 v[8:11], v3, s[{sreg}:{sreg+3}], 0 offen")
    k(f"buffer_load_dwordx4 v[12:15], v3, s[{sreg}:{sreg+3}], 0 offen offset:16")
    k("s_movk_i32 s18, 2080")
    k("v_mul_lo_u32 v5, v2, s18")
    k("v_lshl_add_u32 v5, v1, 1, v5")
    k("s_waitcnt vmcnt(0)")
    for e in range(16):
        r = 8 + e // 2
        if e % 2 == 0:
            k(f"ds_write_b16 v5, v{r} offset:{e*130}")
        else:
            k(f"ds_write_b16_d16_hi v5, v{r} offset:{e*130}")
    k("s_waitcnt lgkmcnt(0)")
    k("s_barrier")
    k("s_movk_i32 s18, 130")
    k("v_mul_lo_u32 v5, v1, s18")
    k("v_lshl_add_u32 v5, v2, 5, v5")
    k("ds_read_b128 v[8:11], v5")
    k("ds_read_b128 v[12:15], v5 offset:16")
    k("s_lshl_b32 s15, s14, 6")
    k("v_add_u32 v3, s15, v1")
    k(f"s_movk_i32 s16, {R*2}")
    k("v_mul_lo_u32 v3, v3, s16")
    k("s_lshl_b32 s17, s13, 7")
    k("v_lshl_add_u32 v4, v2, 5, s17")
    k("v_add_u32 v3, v3, v4")
    k(f"s_mov_b32 s19, {ws_dst}")
    k("s_waitcnt lgkmcnt(0)")
    k("buffer_store_dwordx4 v[8:11], v3, s[8:11], s19 offen")
    k("buffer_store_dwordx4 v[12:15], v3, s[8:11], s19 offen offset:16")
    k("s_endpgm")


RSTR = 144
ARR = 24 * RSTR
WAVE_LDS = 2 * ARR
TB = 4 * WAVE_LDS
KG_LDS = TB + 8448


def role_kgen(k, ch_reg):
    if 'nokgen' in EXP:
        k("s_endpgm")
    k("v_and_b32 v1, 63, v0")
    k("v_lshrrev_b32 v2, 6, v0")
    k("v_and_b32 v3, 31, v1")
    k("v_lshrrev_b32 v4, 5, v1")
    k(f"s_lshl_b32 s12, s{ch_reg}, 8")
    k("v_lshl_add_u32 v5, v2, 5, v3")
    k("v_lshlrev_b32 v5, 1, v5")
    k("v_add_u32 v5, s12, v5")
    for idx, s in enumerate([20, 24, 28, 32]):
        k(f"buffer_load_ushort v{8+idx}, v5, s[{s}:{s+3}], 0 offen")
    k(f"s_lshl_b32 s12, s{ch_reg}, 1")
    k("v_mov_b32 v6, s12")
    k("buffer_load_ushort v12, v6, s[36:39], 0 offen")
    k(f"v_mul_u32_u24 v20, {WAVE_LDS}, v2")
    k("v_lshl_add_u32 v21, v3, 2, v20")
    k(f"v_mul_u32_u24 v23, {11*RSTR}, v4")
    k("v_add_u32 v21, v21, v23")
    k("v_cvt_f32_u32 v22, v4")
    k("v_lshlrev_b32 v29, 3, v3")
    k("v_cvt_f32_u32 v29, v29")
    k("v_lshlrev_b32 v28, 4, v4")
    k("s_mov_b32 s41, 0xffff0000")
    k("s_mov_b32 s42, 0x3fb8aa3b")
    k("s_waitcnt vmcnt(0)")
    for r in range(8, 13):
        k(f"v_lshlrev_b32 v{r}, 16, v{r}")
    k("v_mul_f32 v12, s42, v12")
    k("v_mul_f32 v8, s42, v8")
    k("v_exp_f32 v12, v12")
    k("v_exp_f32 v8, v8")
    k("s_nop 0")
    k("v_cvt_pk_bf16_f32 v12, v12, v8")
    k("v_and_b32 v8, s41, v12")
    k("v_lshlrev_b32 v12, 16, v12")
    k("v_mul_f32 v8, v8, v12")
    k("v_mul_f32 v8, s42, v8")
    k("v_sub_f32 v8, 0, v8")
    k("v_mul_f32 v9, v9, v12")
    k("v_mul_f32 v9, 0x3e22f983, v9")
    k("v_mul_f32 v10, v10, v12")
    k("v_mul_f32 v11, v11, v12")
    k("v_add_f32 v10, v10, v10")
    k("v_add_f32 v11, v11, v11")
    for s_ in range(4):
        for t in range(4):
            r = 80 + 2 * (4 * s_ + t)
            k(f"v_add_u32 v30, {(8*s_+t)*4}, v28")
            k(f"ds_bpermute_b32 v{r}, v30, v8")
            k(f"ds_bpermute_b32 v{r+1}, v30, v9")
    for t in range(11):
        p0 = HI[t]
        p1 = HI[min(11 + t, 20)]
        k(f"v_mov_b32 v30, {fbits(p0)}")
        k(f"v_fmamk_f32 v30, v22, {fbits(p1 - p0)}, v30")
        k("v_mul_f32 v31, v8, v30")
        k("v_mul_f32 v32, v9, v30")
        k("v_exp_f32 v31, v31")
        k("v_fract_f32 v32, v32")
        k("s_nop 0")
        k("v_cos_f32 v33, v32")
        k("v_sin_f32 v34, v32")
        k("s_nop 0")
        k("v_mul_f32 v36, v10, v33")
        k("v_mul_f32 v37, v10, v34")
        k("v_fma_f32 v36, -v11, v34, v36")
        k("v_fma_f32 v37, v11, v33, v37")
        k("v_mul_f32 v36, v36, v31")
        k("v_mul_f32 v37, v37, -v31")
        k("v_cvt_pk_bf16_f32 v38, v36, v37")
        k("v_lshlrev_b32 v39, 16, v38")
        k("v_and_b32 v40, s41, v38")
        k("v_sub_f32 v36, v36, v39")
        k("v_sub_f32 v37, v37, v40")
        k("v_cvt_pk_bf16_f32 v39, v36, v37")
        k(f"ds_write_b32 v21, v38 offset:{t*RSTR}")
        k(f"ds_write_b32 v21, v39 offset:{t*RSTR + ARR}")
    k("s_waitcnt lgkmcnt(0)")
    k(f"v_mul_u32_u24 v41, {RSTR}, v3")
    k("v_min_u32 v41, %d, v41" % (23 * RSTR))
    k("v_lshl_add_u32 v41, v4, 4, v41")
    k("v_add_u32 v41, v41, v20")
    ACC = 64
    for r in range(16):
        k(f"v_mov_b32 v{ACC+r}, 0")
    for s_ in range(4):
        bh = 44 + 8 * (s_ & 1)
        ah = 112 + 8 * (s_ & 1)
        k(f"ds_read_b128 v[{ah}:{ah+3}], v41 offset:{s_*32}")
        k(f"ds_read_b128 v[{ah+4}:{ah+7}], v41 offset:{ARR + s_*32}")
        for t in range(4):
            r = 80 + 2 * (4 * s_ + t)
            k(f"v_mul_f32 v31, v{r}, v29")
            k(f"v_mul_f32 v32, v{r+1}, v29")
            k("v_exp_f32 v31, v31")
            k("v_fract_f32 v32, v32")
            k("s_nop 0")
            k("v_cos_f32 v33, v32")
            k("v_sin_f32 v34, v32")
            k("s_nop 0")
            k("v_mul_f32 v36, v33, v31")
            k("v_mul_f32 v37, v34, v31")
            k(f"v_cvt_pk_bf16_f32 v{bh+t}, v36, v37")
            k(f"v_lshlrev_b32 v39, 16, v{bh+t}")
            k(f"v_and_b32 v40, s41, v{bh+t}")
            k("v_sub_f32 v36, v36, v39")
            k("v_sub_f32 v37, v37, v40")
            k(f"v_cvt_pk_bf16_f32 v{bh+4+t}, v36, v37")
        k("s_waitcnt lgkmcnt(0)")
        k("s_nop 0")
        k(f"v_mfma_f32_32x32x16_bf16 v[{ACC}:{ACC+15}], v[{ah}:{ah+3}], v[{bh}:{bh+3}], v[{ACC}:{ACC+15}]")
        k(f"v_mfma_f32_32x32x16_bf16 v[{ACC}:{ACC+15}], v[{ah}:{ah+3}], v[{bh+4}:{bh+7}], v[{ACC}:{ACC+15}]")
        k(f"v_mfma_f32_32x32x16_bf16 v[{ACC}:{ACC+15}], v[{ah+4}:{ah+7}], v[{bh}:{bh+3}], v[{ACC}:{ACC+15}]")
    k("v_lshlrev_b32 v42, 9, v4")
    k("v_lshl_add_u32 v42, v3, 2, v42")
    k("v_add_u32 v42, v42, v20")
    k("s_nop 7")
    k("s_nop 3")
    for r in range(16):
        row0 = 8 * (r >> 2) + (r & 3)
        if row0 < 21:
            k(f"ds_write_b32 v42, v{ACC+r} offset:{row0*128}")
    k("s_waitcnt lgkmcnt(0)")
    k("s_barrier")
    for it in range(3):
        k(f"v_add_u32 v43, {it*256}, v0")
        k("v_lshlrev_b32 v44, 2, v43")
        for w in range(4):
            k(f"ds_read_b32 v{45+w}, v44 offset:{w*WAVE_LDS}")
        k("v_lshrrev_b32 v50, 5, v43")
        k("v_and_b32 v51, 31, v43")
        k("v_mov_b32 v52, v50")
        k("v_subrev_u32 v53, 8, v50")
        k("v_lshlrev_b32 v53, 1, v53")
        k("v_add_u32 v53, 0x100, v53")
        k("v_cmp_le_u32 vcc, 8, v50")
        k("v_subrev_u32 v54, 12, v50")
        k("v_and_b32 v55, 1, v54")
        k("v_cndmask_b32 v52, v52, v53, vcc")
        k("v_lshlrev_b32 v55, 2, v55")
        k("v_lshrrev_b32 v54, 1, v54")
        k("v_lshl_add_u32 v54, v54, 8, v55")
        k("v_add_u32 v54, 0x200, v54")
        k("v_cmp_le_u32 vcc, 12, v50")
        k("v_subrev_u32 v53, 16, v50")
        k("v_lshlrev_b32 v53, 8, v53")
        k("v_cndmask_b32 v52, v52, v54, vcc")
        k("v_add_u32 v53, 0x400, v53")
        k("v_cmp_le_u32 vcc, 16, v50")
        k("s_nop 1")
        k("v_cndmask_b32 v52, v52, v53, vcc")
        k("v_lshl_add_u32 v52, v51, 3, v52")
        k("v_min_u32 v52, 0x801, v52")
        k("v_cmp_gt_u32 vcc, 0x2a0, v43")
        k("v_mov_b32 v53, 0x801")
        k("s_nop 0")
        k("v_cndmask_b32 v52, v53, v52, vcc")
        k("v_lshlrev_b32 v52, 2, v52")
        k("s_waitcnt lgkmcnt(0)")
        k("v_add_f32 v45, v45, v46")
        k("v_add_f32 v47, v47, v48")
        k("v_add_f32 v45, v45, v47")
        k(f"ds_write_b32 v52, v45 offset:{TB}")
    k("s_waitcnt lgkmcnt(0)")
    k("s_barrier")
    k("v_lshlrev_b32 v43, 3, v0")
    k("v_sub_u32 v43, 0x7ff, v43")
    for e in range(8):
        k(f"v_subrev_u32 v44, {e}, v43")
        k("v_cvt_f32_u32 v44, v44")
        k("v_cvt_pk_bf16_f32 v44, v44, v44")
        k("v_lshlrev_b32 v44, 16, v44")
        k("v_cvt_u32_f32 v44, v44")
        k("v_lshlrev_b32 v44, 2, v44")
        k(f"ds_read_b32 v{48+e}, v44 offset:{TB}")
    k(f"s_lshl_b32 s12, s{ch_reg}, 12")
    k(f"s_add_u32 s12, s12, {WS_KB}")
    k("v_lshlrev_b32 v44, 4, v0")
    k("s_waitcnt lgkmcnt(0)")
    for e in range(4):
        k(f"v_cvt_pk_bf16_f32 v{56+e}, v{48+2*e}, v{49+2*e}")
    k("buffer_store_dwordx4 v[56:59], v44, s[8:11], s12 offen")
    k("s_endpgm")


def role_colsum(k, wg_reg):
    k(f"s_mul_i32 s14, s{wg_reg}, 40960")
    k("v_lshlrev_b32 v1, 4, v0")
    for i in range(10):
        k(f"s_add_u32 s16, s14, {i*4096}")
        k(f"buffer_load_dwordx4 v[{32+4*i}:{35+4*i}], v1, s[52:55], s16 offen")
    k(f"s_cmp_ge_u32 s{wg_reg}, 27")
    k("s_cselect_b32 s44, s48, s44")
    k("s_cselect_b32 s45, s49, s45")
    k("s_cselect_b32 s13, 27, 0")
    k(f"s_sub_u32 s13, s{wg_reg}, s13")
    k("v_and_b32 v1, 31, v0")
    k("v_lshrrev_b32 v2, 5, v0")
    k(f"v_mul_u32_u24 v3, {80 * F * 2}, v2")
    k("v_lshl_add_u32 v3, v1, 2, v3")
    k("s_lshl_b32 s14, s13, 7")
    k("v_mov_b32 v4, 0")
    k("v_mov_b32 v5, 0")
    k("s_mov_b32 s41, 0xffff0000")
    k("s_mov_b32 s15, 0")
    k.label("csl")
    for i in range(16):
        k(f"s_add_u32 s16, s14, {i * F * 2}")
        k(f"buffer_load_dword v{8+i}, v3, s[44:47], s16 offen")
    k(f"s_add_u32 s14, s14, {16 * F * 2}")
    for i in range(16):
        k(f"s_waitcnt vmcnt({15-i})")
        k(f"v_lshlrev_b32 v6, 16, v{8+i}")
        k(f"v_and_b32 v7, s41, v{8+i}")
        k("v_add_f32 v4, v4, v6")
        k("v_add_f32 v5, v5, v7")
    k("s_add_u32 s15, s15, 1")
    k("s_cmp_lt_u32 s15, 5")
    k(f"s_cbranch_scc1 {k.L('csl')}")
    k("v_lshlrev_b32 v6, 3, v0")
    k("ds_write_b64 v6, v[4:5]")
    k("s_waitcnt lgkmcnt(0)")
    k("s_barrier")
    k("v_lshlrev_b32 v6, 3, v1")
    for gq in range(8):
        k(f"ds_read_b64 v[{8+2*gq}:{9+2*gq}], v6 offset:{gq*256}")
    k("s_waitcnt lgkmcnt(0)")
    for gq in range(1, 8):
        k(f"v_add_f32 v8, v8, v{8+2*gq}")
        k(f"v_add_f32 v9, v9, v{9+2*gq}")
    k(f"s_lshl_b32 s14, s{wg_reg}, 8")
    k(f"s_add_u32 s14, s14, {WS_CS}")
    k("v_cmp_gt_u32 vcc, 32, v0")
    k("s_and_saveexec_b64 s[16:17], vcc")
    k(f"s_cbranch_execz {k.L('end')}")
    k("buffer_store_dwordx2 v[8:9], v6, s[8:11], s14 offen")
    k("s_endpgm")


def role_touch(k, wg_reg):
    k(f"s_mul_i32 s14, s{wg_reg}, 81920")
    k("v_lshlrev_b32 v1, 4, v0")
    for i in range(20):
        k(f"s_add_u32 s16, s14, {i*4096}")
        k(f"buffer_load_dwordx4 v[{8+4*(i%8)}:{11+4*(i%8)}], v1, s[52:55], s16 offen")
    k("s_waitcnt vmcnt(0)")
    k("s_endpgm")


def gen_prep(name):
    k = K(name, 128)
    NKG, NLN, NCS = 640, 64, 54
    NTO = 0
    total = NKG + NLN + NCS + NTO
    k(f"s_cmp_ge_u32 s2, {total}")
    k(f"s_cbranch_scc1 {k.L('end')}")
    t = [srd(k, 4, KARG['u'], L * D * 2), srd(k, 8, KARG['ws'], WS_SIZE),
         srd(k, 20, KARG['logA'], D * N * 2), srd(k, 24, KARG['Aim'], D * N * 2), srd(k, 28, KARG['Cr'], D * N * 2),
         srd(k, 32, KARG['Ci'], D * N * 2), srd(k, 36, KARG['logdt'], D * 2),
         srd(k, 44, KARG['wg'], D * F * 2), srd(k, 48, KARG['wu'], D * F * 2), srd(k, 52, KARG['wd'], D * F * 2)]
    k("s_waitcnt lgkmcnt(0)")
    for x in t:
        srd_fin(k, x)
    k(f"s_cmp_lt_u32 s2, {NLN}")
    k(f"s_cbranch_scc1 {k.L('ln1')}")
    k(f"s_sub_u32 s56, s2, {NLN}")
    k(f"s_cmp_lt_u32 s56, {NCS}")
    k(f"s_cbranch_scc1 {k.L('cs')}")
    k(f"s_sub_u32 s56, s56, {NCS}")
    k(f"s_cmp_lt_u32 s56, {NTO}")
    k(f"s_cbranch_scc1 {k.L('to')}")
    k(f"s_sub_u32 s56, s56, {NTO}")
    role_kgen(k, 56)
    k.label("to")
    role_touch(k, 56)
    k.label("cs")
    role_colsum(k, 56)
    k.label("ln1")
    role_ln1(k)
    k.label("end")
    k("s_endpgm")
    if 'wgt' in EXP:
        out = []
        for ln in k.lines:
            if ln.strip() == "s_endpgm":
                out.append("    s_branch " + k.L('fin'))
            else:
                out.append(ln)
        k.lines = ["    s_memrealtime s[90:91]"] + out
        k.label("fin")
        k("s_mov_b64 exec, -1")
        k("s_waitcnt vmcnt(0)")
        k("s_memrealtime s[92:93]")
        k("s_load_dwordx2 s[96:97], s[0:1], 104")
        k("s_waitcnt lgkmcnt(0)")
        k("s_and_b32 s97, s97, 0xffff")
        k("s_mov_b32 s98, 0x10000000")
        k("s_mov_b32 s99, 0x20000")
        k("v_mov_b32 v0, s90")
        k("v_mov_b32 v1, s92")
        k("s_lshl_b32 s94, s2, 4")
        k("v_mov_b32 v4, s94")
        k("s_mov_b32 s95, 0x2c00000")
        k("buffer_store_dwordx2 v[0:1], v4, s[96:99], s95 offen")
        k("s_endpgm")
    return k, max(KG_LDS, 640 * TSTR), total


def gen_ln2(name):
    k = K(name, 128)
    total = 64
    k(f"s_cmp_ge_u32 s2, {total}")
    k(f"s_cbranch_scc1 {k.L('end')}")
    t = [srd(k, 8, KARG['ws'], WS_SIZE)]
    k("v_and_b32 v1, 63, v0")
    k("v_lshrrev_b32 v2, 6, v0")
    k("v_lshrrev_b32 v9, 2, v0")
    k("v_and_b32 v11, 3, v0")
    k("v_lshlrev_b32 v10, 12, v9")
    k("v_lshl_add_u32 v10, v11, 4, v10")
    k("s_lshl_b32 s3, s2, 6")
    k("v_add_u32 v10, s3, v10")
    k(f"v_mul_u32_u24 v9, {TSTR}, v9")
    k("v_lshl_add_u32 v9, v11, 4, v9")
    k("s_waitcnt lgkmcnt(0)")
    for x in t:
        srd_fin(k, x)
    for it in range(10):
        k(f"s_mov_b32 s15, {WS_HT + it*64*4096}")
        k(f"buffer_load_dwordx4 v[{RAW+4*it}:{RAW+4*it+3}], v10, s[8:11], s15 offen")
    bp_addrs(k, BP, 1)
    k("s_lshl_b32 s3, s2, 5")
    k("v_lshlrev_b32 v4, 3, v2")
    k("v_add_u32 v4, s3, v4")
    k("s_movk_i32 s12, 1280")
    k("v_mul_lo_u32 v3, v4, s12")
    k("v_lshl_add_u32 v3, v1, 2, v3")
    k(f"v_mul_u32_u24 v8, {2*TSTR}, v1")
    k("v_lshl_add_u32 v8, v2, 4, v8")
    k("s_mov_b32 s41, 0xffff0000")
    for it in range(10):
        k(f"s_waitcnt vmcnt({9-it})")
        k(f"ds_write_b128 v9, v[{RAW+4*it}:{RAW+4*it+3}] offset:{it*64*TSTR}")
    k("s_waitcnt lgkmcnt(0)")
    k("s_barrier")
    for j in range(5):
        k(f"ds_read_b128 v[104:107], v8 offset:{j*128*TSTR}")
        k(f"ds_read_b128 v[108:111], v8 offset:{j*128*TSTR + TSTR}")
        k("s_waitcnt lgkmcnt(0)")
        for ip in range(4):
            k(f"v_and_b32 v6, 0xffff, v{104+ip}")
            k(f"v_lshl_or_b32 v{RAW+(2*ip)*5+j}, v{108+ip}, 16, v6")
            k(f"v_lshrrev_b32 v6, 16, v{104+ip}")
            k(f"v_and_or_b32 v{RAW+(2*ip+1)*5+j}, v{108+ip}, s41, v6")
    for i in range(8):
        k(f"s_mov_b32 s16, {WS_H + i*1280}")
        for j in range(5):
            k(f"buffer_store_dword v{RAW+i*5+j}, v3, s[8:11], s16 offen offset:{j*256}")
    ln_core_packed(k)
    for i in range(8):
        k(f"s_mov_b32 s15, {WS_HL + i*1280}")
        for j in range(5):
            o = 104 + (i * 5 + j) % 8
            norm_raw(k, o, RAW + i * 5 + j, i)
            k(f"buffer_store_dword v{o}, v3, s[8:11], s15 offen offset:{j*256}")
    k.label("end")
    k("s_endpgm")
    return k, 640 * TSTR, total
```

```python
import os
EXP = os.environ.get('EXP', '')
from gen import K, srd, srd_fin, KARG, WS_SIZE, WS_UT, WS_XT, WS_KB, WS_HT, L, D

US = 80
UB = 64 * US
KS0 = 2 * UB
CS = 4160
LDS_BYTES = KS0 + 8 * CS


def gen_conv(name):
    k = K(name, 160)
    k(f"s_cmp_ge_u32 s2, {D}")
    k(f"s_cbranch_scc1 {k.L('end')}")
    t = [srd(k, 4, KARG['ws'], WS_SIZE), srd(k, 8, KARG['dskip'], D * 2)]
    if 'stamp' in EXP:
        k("s_memtime s[60:61]")
    k("v_lshlrev_b32 v1, 4, v0")
    k("s_lshl_b32 s12, s2, 12")
    k("s_waitcnt lgkmcnt(0)")
    for x in t:
        srd_fin(k, x)
    k(f"s_add_u32 s13, s12, {WS_UT}")
    k(f"s_add_u32 s14, s12, {WS_KB}")
    for it in range(4):
        k(f"buffer_load_dwordx4 v[{16+4*it}:{19+4*it}], v1, s[4:7], s13 offen offset:{it*1024}")
    for it in range(4):
        k(f"buffer_load_dwordx4 v[{32+8*it}:{35+8*it}], v1, s[4:7], s14 offen offset:{it*1024}")
        k(f"buffer_load_dwordx4 v[{36+8*it}:{39+8*it}], v1, s[4:7], s14 offen offset:{it*1024+16}")
    k("s_lshl_b32 s15, s2, 1")
    k("v_mov_b32 v2, s15")
    k("buffer_load_ushort v15, v2, s[8:11], 0 offen")
    k("v_and_b32 v11, 31, v0")
    k("v_lshrrev_b32 v12, 5, v0")
    k("v_lshlrev_b32 v112, 6, v11")
    k("v_lshl_add_u32 v112, v12, 3, v112")
    k(f"s_add_u32 s16, s12, {WS_XT}")
    k("s_mul_i32 s17, s2, 4224")
    k(f"s_add_u32 s17, s17, {WS_HT}")
    for cb in range(2):
        for rq in range(4):
            r = 96 + 2 * (cb * 4 + rq)
            k(f"buffer_load_dwordx2 v[{r}:{r+1}], v112, s[4:7], s16 offen offset:{2048*cb+16*rq}")
    for r in range(64, 68):
        k(f"v_mov_b32 v{r}, 0")
    for it in range(5):
        k(f"ds_write_b128 v1, v[64:67] offset:{it*1024}")
    k("v_mul_u32_u24 v3, 52, v0")
    k("v_lshrrev_b32 v3, 8, v3")
    k("v_mul_u32_u24 v4, 5, v3")
    k("v_sub_u32 v4, v0, v4")
    k(f"v_mul_u32_u24 v3, {CS}, v3")
    k("v_lshl_add_u32 v3, v4, 4, v3")
    k("v_cmp_gt_u32 vcc, 40, v0")
    k("s_and_saveexec_b64 s[20:21], vcc")
    k(f"ds_write_b128 v3, v[64:67] offset:{KS0 + 4080}")
    k("s_mov_b64 exec, s[20:21]")
    k("v_lshrrev_b32 v5, 2, v0")
    k(f"v_mul_u32_u24 v5, {US}, v5")
    k("v_and_b32 v6, 3, v0")
    k("v_lshl_add_u32 v5, v6, 4, v5")
    k("s_waitcnt vmcnt(17)")
    k("s_waitcnt lgkmcnt(0)")
    for it in range(4):
        k(f"ds_write_b128 v5, v[{16+4*it}:{19+4*it}] offset:{UB + it*16*US}")
    k("s_waitcnt vmcnt(9)")
    k("v_cmp_eq_u32 vcc, 63, v0")
    k("s_nop 1")
    for i in range(4):
        k(f"v_cndmask_b32 v{36+24+i}, v{36+24+i}, v64, vcc")
    for it in range(4):
        d0 = 32 + 8 * it
        for c in range(8):
            s = 7 - c
            off = KS0 + c * CS + it * 1024
            if s % 2 == 0:
                tt = s // 2
                k(f"ds_write_b128 v1, v[{d0+tt}:{d0+tt+3}] offset:{off}") if (d0 + tt) % 2 == 0 else None
                if (d0 + tt) % 2:
                    for i in range(4):
                        k(f"v_mov_b32 v{68+i}, v{d0+tt+i}")
                    k(f"ds_write_b128 v1, v[68:71] offset:{off}")
            else:
                tt = s // 2
                tr = 72 + 4 * (c & 1)
                for i in range(4):
                    k(f"v_alignbit_b32 v{tr+i}, v{d0+tt+i+1}, v{d0+tt+i}, 16")
                k(f"ds_write_b128 v1, v[{tr}:{tr+3}] offset:{off}")
    k("v_and_b32 v3, 7, v11")
    k(f"v_mul_u32_u24 v13, {CS}, v3")
    k("v_lshrrev_b32 v3, 3, v11")
    k("v_sub_u32 v3, v12, v3")
    k("v_lshl_add_u32 v13, v3, 4, v13")
    k(f"v_add_u32 v13, {KS0 + 4080 - 448}, v13")
    k(f"v_mul_u32_u24 v14, {US}, v11")
    k("v_lshl_add_u32 v14, v12, 4, v14")
    k(f"v_add_u32 v113, {UB}, v14")
    k(f"v_add_u32 v14, {UB - 7*US}, v14")
    k("v_lshlrev_b32 v3, 3, v12")
    k("v_sub_u32 v113, v113, v3")
    ACC0, ACC1 = 114, 130
    for r in range(32):
        k(f"v_mov_b32 v{ACC0+r}, 0")
    k("s_waitcnt lgkmcnt(0)")
    k("s_barrier")
    if 'stamp' in EXP:
        k("s_memtime s[62:63]")

    def reads(j, s, both):
        b = 16 + 24 * s
        oa = 64 * (7 - j)
        ob = US * (7 - j)
        k(f"ds_read_b128 v[{b}:{b+3}], v13 offset:{oa}")
        k(f"ds_read_b128 v[{b+4}:{b+7}], v13 offset:{oa+32}")
        if both:
            k(f"ds_read_b128 v[{b+8}:{b+11}], v14 offset:{ob}")
            k(f"ds_read_b128 v[{b+12}:{b+15}], v14 offset:{ob+32}")
        k(f"ds_read_b128 v[{b+16}:{b+19}], v14 offset:{ob+32*US}")
        k(f"ds_read_b128 v[{b+20}:{b+23}], v14 offset:{ob+32*US+32}")

    def mf(s, both):
        b = 16 + 24 * s
        if both:
            k(f"v_mfma_f32_32x32x16_bf16 v[{ACC0}:{ACC0+15}], v[{b}:{b+3}], v[{b+8}:{b+11}], v[{ACC0}:{ACC0+15}]")
        k(f"v_mfma_f32_32x32x16_bf16 v[{ACC1}:{ACC1+15}], v[{b}:{b+3}], v[{b+16}:{b+19}], v[{ACC1}:{ACC1+15}]")
        if both:
            k(f"v_mfma_f32_32x32x16_bf16 v[{ACC0}:{ACC0+15}], v[{b+4}:{b+7}], v[{b+12}:{b+15}], v[{ACC0}:{ACC0+15}]")
        k(f"v_mfma_f32_32x32x16_bf16 v[{ACC1}:{ACC1+15}], v[{b+4}:{b+7}], v[{b+20}:{b+23}], v[{ACC1}:{ACC1+15}]")

    for phase in range(2):
        both = phase == 0
        n = 6 if both else 4
        k("s_mov_b32 s18, 0")
        reads(0, 0, both)
        k.label(f"p{phase}")
        for j in range(8):
            if j < 7:
                reads(j + 1, (j + 1) & 1, both)
            else:
                k("v_subrev_u32 v13, 512, v13")
                k(f"v_subrev_u32 v14, {8*US}, v14")
                if phase == 1:
                    k("v_max_i32 v13, 0, v13")
                    k("v_max_i32 v14, 0, v14")
                reads(0, 0, both)
            k(f"s_waitcnt lgkmcnt({n})")
            mf(j & 1, both)
        k("s_add_u32 s18, s18, 1")
        k("s_cmp_lt_u32 s18, 4")
        k(f"s_cbranch_scc1 {k.L(f'p{phase}')}")
        k("s_waitcnt lgkmcnt(0)")
    if 'stamp' in EXP:
        k("s_memtime s[64:65]")
    k("v_lshlrev_b32 v15, 16, v15")
    k("s_mov_b32 s19, 0xffff0000")
    for cb in range(2):
        for rq in range(4):
            u = 18 + 2 * (cb * 4 + rq)
            k(f"ds_read_b64 v[{u}:{u+1}], v113 offset:{32*US*cb+16*rq}")
    k("s_nop 4")
    k("s_waitcnt vmcnt(0) lgkmcnt(0)")
    for cb in range(2):
        for rq in range(4):
            u = 18 + 2 * (cb * 4 + rq)
            x = 96 + 2 * (cb * 4 + rq)
            for p in range(2):
                acc = (ACC0 if cb == 0 else ACC1) + 4 * rq + 2 * p
                k(f"v_lshlrev_b32 v40, 16, v{u+p}")
                k(f"v_and_b32 v41, s19, v{u+p}")
                k("v_mul_f32 v40, v40, v15")
                k("v_mul_f32 v41, v41, v15")
                k("v_cvt_pk_bf16_f32 v40, v40, v41")
                k(f"v_cvt_pk_bf16_f32 v42, v{acc}, v{acc+1}")
                k("v_lshlrev_b32 v41, 16, v40")
                k("v_and_b32 v40, s19, v40")
                k("v_lshlrev_b32 v43, 16, v42")
                k("v_and_b32 v42, s19, v42")
                k("v_add_f32 v41, v41, v43")
                k("v_add_f32 v40, v40, v42")
                k("v_cvt_pk_bf16_f32 v42, v41, v40")
                k(f"v_lshlrev_b32 v41, 16, v{x+p}")
                k(f"v_and_b32 v40, s19, v{x+p}")
                k("v_lshlrev_b32 v43, 16, v42")
                k("v_and_b32 v42, s19, v42")
                k("v_add_f32 v41, v41, v43")
                k("v_add_f32 v40, v40, v42")
                k(f"v_cvt_pk_bf16_f32 v{x+p}, v41, v40")
            k(f"buffer_store_dwordx2 v[{x}:{x+1}], v112, s[4:7], s17 offen offset:{2048*cb+16*rq}")
    if 'stamp' in EXP:
        k("s_waitcnt vmcnt(0)")
        k("s_memtime s[66:67]")
        k("s_load_dwordx2 s[68:69], s[0:1], 96")
        k("s_waitcnt lgkmcnt(0)")
        k("s_and_b32 s69, s69, 0xffff")
        k("s_movk_i32 s70, 256")
        k("s_mov_b32 s71, 0x20000")
        k("s_sub_u32 s62, s62, s60")
        k("s_sub_u32 s64, s64, s60")
        k("s_sub_u32 s66, s66, s60")
        k("v_mov_b32 v1, s62")
        k("v_mov_b32 v2, s64")
        k("v_mov_b32 v3, s66")
        k("v_mov_b32 v0, 0")
        k("s_cmp_lg_u32 s2, 37")
        k(f"s_cbranch_scc1 {k.L('end')}")
        k("buffer_store_dwordx4 v[0:3], v0, s[68:71], 0 offen")
    k.label("end")
    k("s_endpgm")
    return k, LDS_BYTES
```

```python
import os
EXP = os.environ.get('EXP', '')
from gen import K, srd, srd_fin, KARG, WS_SIZE, WS_HT, WS_HA, WS_CS, WS_ST, L, D, F
HTP = 4224


def gen_gemm1(name):
    NS = int(os.environ.get("G1NS","4"))
    nk = 20
    NST = 32
    nwg = 16 * 27 + NST
    WRB = F * 2
    SUB = 4096
    STAGE = 4 * SUB
    LPW = 4
    k = K(name, 240)
    k(f"s_cmp_ge_u32 s2, {nwg}")
    k(f"s_cbranch_scc1 {k.L('end')}")
    t = [srd(k, 4, KARG['ws'], WS_SIZE), srd(k, 44, KARG['wg'], D * F * 2), srd(k, 48, KARG['wu'], D * F * 2), srd(k, 52, KARG['dbg'], 256)]
    k(f"s_cmp_lt_u32 s2, {NST}")
    k(f"s_cbranch_scc1 {k.L('stats')}")
    k(f"s_sub_u32 s2, s2, {NST}")
    if 'stamp' in EXP:
        k("s_memtime s[60:61]")
    if 'wgtg' in EXP:
        k("s_memrealtime s[60:61]")
    k("v_lshrrev_b32 v1, 6, v0")
    k("v_and_b32 v2, 63, v0")
    k("s_and_b32 s12, s2, 7")
    k("s_mul_i32 s12, s12, 54")
    k("s_lshr_b32 s13, s2, 3")
    k("s_add_u32 s3, s12, s13")
    k("s_and_b32 s12, s3, 15")
    k("v_readfirstlane_b32 s14, v1")
    k("s_lshr_b32 s13, s3, 4")
    k("v_lshrrev_b32 v4, 4, v2")
    k("v_and_b32 v4, 1, v4")
    k("v_lshlrev_b32 v4, 2, v4")
    k("v_and_b32 v5, 7, v2")
    k("v_xor_b32 v19, v4, v5")
    k("v_lshrrev_b32 v3, 3, v2")
    k(f"v_mul_u32_u24 v4, {WRB}, v3")
    k("v_lshl_add_u32 v8, v19, 4, v4")
    k(f"v_add_u32 v9, {8 * WRB - 1024}, v8")
    k(f"v_mul_u32_u24 v4, {HTP}, v3")
    k("v_lshl_add_u32 v6, v19, 4, v4")
    k(f"v_add_u32 v7, {8 * HTP - 1024}, v6")
    k("s_waitcnt lgkmcnt(0)")
    for x in t:
        srd_fin(k, x)
    k("s_lshr_b32 s17, s14, 1")
    k("s_and_b32 s18, s14, 1")
    k("s_lshl_b32 s16, s12, 8")
    k("s_lshl_b32 s15, s17, 7")
    k("s_add_u32 s16, s16, s15")
    k(f"s_mul_i32 s15, s18, {16 * HTP}")
    k("s_add_u32 s16, s16, s15")
    k(f"s_add_u32 s16, s16, {WS_HT}")
    k("s_cmp_eq_u32 s17, 0")
    k("s_cselect_b32 s44, s44, s48")
    k("s_cselect_b32 s45, s45, s49")
    k(f"s_mul_i32 s17, s18, {16 * WRB}")
    k("s_lshl_b32 s15, s13, 7")
    k("s_add_u32 s17, s17, s15")
    k("s_lshl_b32 s19, s14, 11")
    k(f"s_add_u32 s20, s19, {2 * SUB}")

    def issue_stage(st):
        so = st * STAGE
        k(f"s_add_u32 m0, s19, {so}")
        k("s_nop 0")
        for i in range(2):
            k(f"buffer_load_dwordx4 v{6+i}, s[4:7], s16 offen offset:{i*1024} lds")
        k(f"s_add_u32 m0, s20, {so}")
        k(f"s_add_u32 s16, s16, {32 * HTP}")
        for i in range(2):
            k(f"buffer_load_dwordx4 v{8+i}, s[44:47], s17 offen offset:{i*1024} lds")
        k(f"s_add_u32 s17, s17, {32 * WRB}")

    for st in range(NS - 1):
        issue_stage(st)
    k("v_and_b32 v10, 31, v2")
    k("v_lshrrev_b32 v11, 5, v2")
    k("v_and_b32 v12, 1, v1")
    k("v_lshrrev_b32 v13, 1, v1")
    k("v_and_b32 v14, 15, v2")
    k("v_lshrrev_b32 v14, 2, v14")
    k("v_lshl_add_u32 v14, v11, 3, v14")
    k("v_lshlrev_b32 v14, 7, v14")
    k("v_lshrrev_b32 v3, 4, v2")
    k("v_and_b32 v3, 1, v3")
    k("v_lshlrev_b32 v3, 1, v3")
    k("v_and_b32 v4, 3, v2")
    k("v_lshrrev_b32 v4, 1, v4")
    k("v_add_u32 v3, v3, v4")
    k("v_lshrrev_b32 v4, 3, v2")
    k("v_and_b32 v4, 1, v4")
    k("v_lshlrev_b32 v4, 2, v4")
    k("v_xor_b32 v3, v3, v4")
    k("v_lshl_add_u32 v14, v3, 4, v14")
    k("v_and_b32 v4, 1, v2")
    k("v_lshl_add_u32 v14, v4, 3, v14")
    k("v_lshlrev_b32 v3, 6, v13")
    k("v_xor_b32 v22, v3, v14")
    k(f"v_add_u32 v22, {2 * SUB}, v22")
    k("v_lshl_add_u32 v20, v12, 12, v14")
    k("v_xor_b32 v21, 64, v20")
    FR = 24
    ACC = 56
    HR = 120
    S1, S2 = 128, 144
    CS = 160
    for r in range(64):
        k(f"v_mov_b32 v{ACC+r}, 0")
    for r in range(32):
        k(f"v_mov_b32 v{S1+r}, 0")
    for r in range(4):
        k(f"v_mov_b32 v{HR+4+r}, 0x3f803f80")
    k("s_lshl_b32 s22, s12, 7")
    k("v_lshl_add_u32 v17, v12, 6, v10")
    k("v_add_u32 v17, s22, v17")
    k("s_lshl_b32 s22, s13, 6")
    k("v_lshlrev_b32 v18, 5, v13")
    k("v_lshl_add_u32 v18, v11, 2, v18")
    k("v_add_u32 v18, s22, v18")
    k("v_lshlrev_b32 v3, 2, v18")
    k(f"s_mov_b32 s27, {WS_CS}")
    k(f"s_mov_b32 s28, {WS_CS + F*4}")
    for wi in range(2):
        for rq in range(4):
            r = CS + 16 * wi + 4 * rq
            k(f"buffer_load_dwordx4 v[{r}:{r+3}], v3, s[4:7], s{27+wi} offen offset:{rq*32}")
    k("s_lshr_b32 s31, s14, 1")
    k(f"s_movk_i32 s26, {F*2}")
    k("v_mul_lo_u32 v17, v17, s26")
    k("v_lshl_add_u32 v17, v18, 1, v17")
    cnt = [0]

    def reads(st, kk):
        b = FR + 16 * kk
        so = st * STAGE + kk * 2048
        for wi in range(2):
            for hh in range(2):
                k(f"ds_read_b64_tr_b16 v[{b+4*wi+2*hh}:{b+4*wi+2*hh+1}], v22 offset:{so + wi*SUB + hh*512}")
        for xi in range(2):
            for hh in range(2):
                k(f"ds_read_b64_tr_b16 v[{b+8+4*xi+2*hh}:{b+8+4*xi+2*hh+1}], v{20+xi} offset:{so + hh*512}")

    def mfmas(kk):
        b = FR + 16 * kk
        for wi in range(2):
            for xi in range(2):
                a = ACC + (wi * 2 + xi) * 16
                k(f"v_mfma_f32_32x32x16_bf16 v[{a}:{a+15}], v[{b+4*wi}:{b+4*wi+3}], v[{b+8+4*xi}:{b+8+4*xi+3}], v[{a}:{a+15}]")

    def body(st):
        reads(st, 1)
        k("s_waitcnt lgkmcnt(8)")
        mfmas(0)
        k(f"s_waitcnt vmcnt({(NS - 3) * LPW})")
        k("s_barrier")
        issue_stage((st + NS - 1) % NS)
        reads((st + 1) % NS, 0)
        k("s_waitcnt lgkmcnt(8)")
        mfmas(1)

    k(f"s_waitcnt vmcnt({(NS - 2) * LPW + 8})")
    k("s_barrier")
    if 'stamp' in EXP:
        k("s_memtime s[62:63]")
    reads(0, 0)
    T = nk - 1
    P = T % NS
    for i in range(P):
        body(i % NS)
    k(f"s_mov_b32 s39, {T // NS}")
    k.label("loop")
    for j in range(NS):
        body((P + j) % NS)
    k("s_sub_u32 s39, s39, 1")
    k("s_cmp_lg_u32 s39, 0")
    k(f"s_cbranch_scc1 {k.L('loop')}")
    st = T % NS
    reads(st, 1)
    k("s_waitcnt lgkmcnt(8)")
    mfmas(0)
    k("s_waitcnt lgkmcnt(0)")
    mfmas(1)
    if 'stamp' in EXP:
        k("s_memtime s[64:65]")
    k("s_mov_b32 s25, 0xffff0000")
    k("s_lshl_b32 s32, s12, 3")
    k("v_mov_b32 v3, s32")
    k.label("poll")
    k("buffer_load_dwordx2 v[24:25], v3, s[52:55], 0 offen sc1")
    k("s_waitcnt vmcnt(0)")
    k("v_and_b32 v24, v24, v25")
    k("s_nop 0")
    k("v_readfirstlane_b32 s33, v24")
    k("s_nop 3")
    k("s_cmp_eq_u32 s33, 1")
    k(f"s_cbranch_scc1 {k.L('pollok')}")
    k("s_sleep 2")
    k(f"s_branch {k.L('poll')}")
    k.label("pollok")
    k("s_lshl_b32 s32, s12, 7")
    k("v_lshl_add_u32 v3, v12, 6, v10")
    k("v_add_u32 v3, s32, v3")
    k("v_lshlrev_b32 v3, 3, v3")
    k(f"s_mov_b32 s32, {WS_ST}")
    k("buffer_load_dwordx2 v[24:25], v3, s[4:7], s32 offen sc1")
    k("buffer_load_dwordx2 v[26:27], v3, s[4:7], s32 offen offset:256 sc1")
    k("s_waitcnt vmcnt(0)")
    k("s_mov_b32 s40, 0x3acccccd")
    k("s_waitcnt lgkmcnt(0)")
    for xi in range(2):
        k(f"v_mul_f32 v5, s40, v{24+2*xi}")
        k(f"v_mul_f32 v6, s40, v{25+2*xi}")
        k("v_fma_f32 v6, -v5, v5, v6")
        k("v_max_f32 v6, 0, v6")
        k("v_cvt_pk_bf16_f32 v6, v6, v5")
        k(f"v_and_b32 v{HR+xi}, s25, v6")
        k("v_lshlrev_b32 v6, 16, v6")
        k("v_add_f32 v6, 0x3727c5ac, v6")
        k("v_cvt_pk_bf16_f32 v6, v6, v6")
        k("v_lshlrev_b32 v6, 16, v6")
        k("v_sqrt_f32 v6, v6")
        k("s_nop 0")
        k("v_cvt_pk_bf16_f32 v6, v6, v6")
        k("v_lshlrev_b32 v6, 16, v6")
        k(f"v_rcp_f32 v{HR+2+xi}, v6")
    k(f"s_mov_b32 s27, {WS_HA}")
    k(f"s_add_u32 s28, s27, {32*F*2}")
    k("v_mov_b32 v19, 0x3d372713")
    k("v_mov_b32 v20, 0x40135761")
    T0 = 192
    for xi in range(2):
        k(f"v_sub_f32 v{216+2*xi}, 0, v{HR+xi}")
        k(f"v_sub_f32 v{217+2*xi}, 0, v{HR+xi}")
        k(f"v_mov_b32 v{220+2*xi}, v{HR+2+xi}")
        k(f"v_mov_b32 v{221+2*xi}, v{HR+2+xi}")
    k("v_mov_b32 v224, 0x3d372713")
    k("v_mov_b32 v225, 0x3d372713")
    k("v_mov_b32 v226, 0x40135761")
    k("v_mov_b32 v227, 0x40135761")
    for xi in range(2):
        nm = f"v[{216+2*xi}:{217+2*xi}]"
        rsp = f"v[{220+2*xi}:{221+2*xi}]"
        for rq in range(4):
            for p2 in range(2):
                ga = ACC + xi * 16 + 4 * rq + 2 * p2
                ua = ACC + (2 + xi) * 16 + 4 * rq + 2 * p2
                cg = CS + 4 * rq + 2 * p2
                cu = CS + 16 + 4 * rq + 2 * p2
                k(f"v_pk_fma_f32 v[{ga}:{ga+1}], {nm}, v[{cg}:{cg+1}], v[{ga}:{ga+1}]")
                k(f"v_pk_fma_f32 v[{ua}:{ua+1}], {nm}, v[{cu}:{cu+1}], v[{ua}:{ua+1}]")
                k(f"v_pk_mul_f32 v[{ga}:{ga+1}], v[{ga}:{ga+1}], {rsp}")
                k(f"v_pk_mul_f32 v[{ua}:{ua+1}], v[{ua}:{ua+1}], {rsp}")
                g0 = T0 + 2 * p2
                u0 = T0 + 4 + 2 * p2
                z0 = T0 + 8 + 2 * p2
                k(f"v_cvt_pk_bf16_f32 v{z0}, v{ga}, v{ga+1}")
                k(f"v_cvt_pk_bf16_f32 v{z0+1}, v{ua}, v{ua+1}")
                k(f"v_lshlrev_b32 v{g0}, 16, v{z0}")
                k(f"v_and_b32 v{g0+1}, s25, v{z0}")
                k(f"v_lshlrev_b32 v{u0}, 16, v{z0+1}")
                k(f"v_and_b32 v{u0+1}, s25, v{z0+1}")
                k(f"v_pk_mul_f32 v[{z0}:{z0+1}], v[{g0}:{g0+1}], v[{g0}:{g0+1}]")
                k(f"v_pk_mul_f32 v[{z0}:{z0+1}], v[{z0}:{z0+1}], v[224:225]")
                k(f"v_pk_fma_f32 v[{z0}:{z0+1}], v[{z0}:{z0+1}], v[{g0}:{g0+1}], v[{g0}:{g0+1}]")
                k(f"v_pk_mul_f32 v[{z0}:{z0+1}], v[{z0}:{z0+1}], v[226:227]")
            for e in range(4):
                k(f"v_exp_f32 v{T0+8+e}, v{T0+8+e}")
            k("s_nop 0")
            for e in range(4):
                k(f"v_add_f32 v{T0+8+e}, 1.0, v{T0+8+e}")
            for e in range(4):
                k(f"v_rcp_f32 v{T0+8+e}, v{T0+8+e}")
            k("s_nop 0")
            o = 208 + 2 * ((xi * 4 + rq) & 3)
            for p2 in range(2):
                g0 = T0 + 2 * p2
                u0 = T0 + 4 + 2 * p2
                z0 = T0 + 8 + 2 * p2
                k(f"v_pk_fma_f32 v[{z0}:{z0+1}], v[{g0}:{g0+1}], v[{z0}:{z0+1}], v[{g0}:{g0+1}] neg_lo:[1,0,0] neg_hi:[1,0,0]")
                k(f"v_cvt_pk_bf16_f32 v{z0}, v{z0}, v{z0+1}")
                k(f"v_and_b32 v{z0+1}, s25, v{z0}")
                k(f"v_lshlrev_b32 v{z0}, 16, v{z0}")
                k(f"v_pk_mul_f32 v[{z0}:{z0+1}], v[{z0}:{z0+1}], v[{u0}:{u0+1}]")
                k(f"v_cvt_pk_bf16_f32 v{o+p2}, v{z0}, v{z0+1}")
            k(f"buffer_store_dwordx2 v[{o}:{o+1}], v17, s[4:7], s{27+xi} offen offset:{rq*16}")
    if 'stamp' in EXP:
        k("s_waitcnt vmcnt(0)")
        k("s_memtime s[66:67]")
        k("s_load_dwordx2 s[68:69], s[0:1], 96")
        k("s_waitcnt lgkmcnt(0)")
        k("s_and_b32 s69, s69, 0xffff")
        k("s_movk_i32 s70, 256")
        k("s_mov_b32 s71, 0x20000")
        k("s_sub_u32 s62, s62, s60")
        k("s_sub_u32 s64, s64, s60")
        k("s_sub_u32 s66, s66, s60")
        k("v_mov_b32 v1, s62")
        k("v_mov_b32 v2, s64")
        k("v_mov_b32 v3, s66")
        k("v_mov_b32 v0, 0")
        k("s_cmp_lg_u32 s2, 37")
        k(f"s_cbranch_scc1 {k.L('end')}")
        k("buffer_store_dwordx4 v[0:3], v0, s[68:71], 0 offen")
    if 'wgtg' in EXP:
        k("s_waitcnt vmcnt(0)")
        k("s_memrealtime s[62:63]")
        k("s_getreg_b32 s64, hwreg(HW_REG_HW_ID)")
        k("s_waitcnt lgkmcnt(0)")
        k("v_mov_b32 v0, s60")
        k("v_mov_b32 v1, s62")
        k("v_mov_b32 v2, s64")
        k("v_mov_b32 v3, 0")
        k("s_lshl_b32 s65, s2, 4")
        k("v_mov_b32 v4, s65")
        k("s_mov_b32 s66, 0x2c00000")
        k("buffer_store_dwordx4 v[0:3], v4, s[4:7], s66 offen")
    k("s_endpgm")
    k.label("stats")
    k("s_waitcnt lgkmcnt(0)")
    for x in t:
        srd_fin(k, x)
    k("v_and_b32 v1, 31, v0")
    k("v_lshrrev_b32 v2, 5, v0")
    k(f"v_mul_u32_u24 v3, {80 * HTP}, v2")
    k("v_lshl_add_u32 v3, v1, 2, v3")
    k("s_lshl_b32 s14, s2, 7")
    k(f"s_add_u32 s14, s14, {WS_HT}")
    for r in range(4, 8):
        k(f"v_mov_b32 v{r}, 0")
    k("s_mov_b32 s41, 0xffff0000")
    k("s_mov_b32 s15, 0")
    k.label("stl")
    for i in range(16):
        k(f"s_add_u32 s16, s14, {i * HTP}")
        k(f"buffer_load_dword v{16+i}, v3, s[4:7], s16 offen")
    k(f"s_add_u32 s14, s14, {16 * HTP}")
    for i in range(16):
        k(f"s_waitcnt vmcnt({15-i})")
        k(f"v_lshlrev_b32 v8, 16, v{16+i}")
        k(f"v_and_b32 v9, s41, v{16+i}")
        k("v_add_f32 v4, v4, v8")
        k("v_fmac_f32 v5, v8, v8")
        k("v_add_f32 v6, v6, v9")
        k("v_fmac_f32 v7, v9, v9")
    k("s_add_u32 s15, s15, 1")
    k("s_cmp_lt_u32 s15, 5")
    k(f"s_cbranch_scc1 {k.L('stl')}")
    k("v_lshlrev_b32 v8, 4, v0")
    k("ds_write_b128 v8, v[4:7]")
    k("s_waitcnt lgkmcnt(0)")
    k("s_barrier")
    k("v_lshlrev_b32 v8, 4, v1")
    for gq in range(8):
        k(f"ds_read_b128 v[{16+4*gq}:{19+4*gq}], v8 offset:{gq*512}")
    k("s_waitcnt lgkmcnt(0)")
    for gq in range(1, 8):
        for c in range(4):
            k(f"v_add_f32 v{16+c}, v{16+c}, v{16+4*gq+c}")
    k("s_lshl_b32 s14, s2, 9")
    k(f"s_add_u32 s14, s14, {WS_ST}")
    k("v_cmp_gt_u32 vcc, 32, v0")
    k("s_and_saveexec_b64 s[16:17], vcc")
    k(f"s_cbranch_execz {k.L('stskip')}")
    k("buffer_store_dwordx4 v[16:19], v8, s[4:7], s14 offen sc1")
    k("s_waitcnt vmcnt(0)")
    k.label("stskip")
    k("s_mov_b64 exec, s[16:17]")
    k("s_barrier")
    k("v_cmp_eq_u32 vcc, 0, v0")
    k("s_and_saveexec_b64 s[16:17], vcc")
    k(f"s_cbranch_execz {k.L('end')}")
    k("s_lshl_b32 s14, s2, 2")
    k("v_mov_b32 v4, s14")
    k("v_mov_b32 v5, 1")
    k("buffer_store_dword v5, v4, s[52:55], 0 offen sc1")
    k.label("end")
    k("s_endpgm")
    return k, NS * STAGE, nwg, 256
```

```python
import os, struct
EXP = os.environ.get('EXP', '')
from gen import K, srd, srd_fin, KARG, WS_SIZE, WS_UT, WS_XT, WS_KB, WS_HT, WS_H, WS_HL, WS_WGT, WS_WUT, WS_WDT, WS_CS, L, D, N, F


def fbits(x):
    return "0x%08x" % struct.unpack("<I", struct.pack("<f", float(x)))[0]


HI = list(range(8)) + [256 + 2 * i for i in range(4)] + [512, 516, 768, 772] + [1024 + 256 * i for i in range(4)] + [2048]


def ln_core(k, VB, SUM, TMP, MEAN, RS, BP, NR=8):
    for i in range(NR):
        k(f"v_add_f32 v{SUM+i}, v{VB+i*10}, v{VB+i*10+1}")
        for e in range(2, 10):
            k(f"v_add_f32 v{SUM+i}, v{SUM+i}, v{VB+i*10+e}")

    def reduce8():
        for h in range(6):
            for i in range(NR):
                k(f"ds_bpermute_b32 v{TMP+i}, v{BP+h}, v{SUM+i}")
            k("s_waitcnt lgkmcnt(0)")
            for i in range(NR):
                k(f"v_add_f32 v{SUM+i}, v{SUM+i}, v{TMP+i}")
    reduce8()
    k("s_mov_b32 s40, 0x3acccccd")
    k("s_mov_b32 s41, 0xffff0000")
    for i in range(NR):
        k(f"v_mul_f32 v{MEAN+i}, s40, v{SUM+i}")
    for i in range(NR):
        k(f"v_sub_f32 v{TMP+i}, v{VB+i*10}, v{MEAN+i}")
        k(f"v_mul_f32 v{SUM+i}, v{TMP+i}, v{TMP+i}")
        for e in range(1, 10):
            k(f"v_sub_f32 v{TMP+i}, v{VB+i*10+e}, v{MEAN+i}")
            k(f"v_fmac_f32 v{SUM+i}, v{TMP+i}, v{TMP+i}")
    reduce8()
    for i in range(NR):
        k(f"v_mul_f32 v{TMP+i}, s40, v{SUM+i}")
        k(f"v_cvt_pk_bf16_f32 v{TMP+i}, v{TMP+i}, v{MEAN+i}")
        k(f"v_and_b32 v{MEAN+i}, s41, v{TMP+i}")
        k(f"v_lshlrev_b32 v{TMP+i}, 16, v{TMP+i}")
        k(f"v_add_f32 v{TMP+i}, 0x3727c5ac, v{TMP+i}")
        k(f"v_cvt_pk_bf16_f32 v{TMP+i}, v{TMP+i}, v{TMP+i}")
        k(f"v_lshlrev_b32 v{TMP+i}, 16, v{TMP+i}")
    for i in range(NR):
        k(f"v_sqrt_f32 v{TMP+i}, v{TMP+i}")
    k("s_nop 0")
    for i in range(NR):
        k(f"v_cvt_pk_bf16_f32 v{TMP+i}, v{TMP+i}, v{TMP+i}")
        k(f"v_lshlrev_b32 v{TMP+i}, 16, v{TMP+i}")
    for i in range(NR):
        k(f"v_rcp_f32 v{RS+i}, v{TMP+i}")
    k("s_nop 0")


def norm_pair(k, dst, a, ma, ra, b, mb, rb, t0, t1):
    k(f"v_sub_f32 v{t0}, v{a}, v{ma}")
    k(f"v_sub_f32 v{t1}, v{b}, v{mb}")
    k(f"v_cvt_pk_bf16_f32 v{t0}, v{t0}, v{t1}")
    k(f"v_and_b32 v{t1}, s41, v{t0}")
    k(f"v_lshlrev_b32 v{t0}, 16, v{t0}")
    k(f"v_mul_f32 v{t0}, v{t0}, v{ra}")
    k(f"v_mul_f32 v{t1}, v{t1}, v{rb}")
    k(f"v_cvt_pk_bf16_f32 v{dst}, v{t0}, v{t1}")


def bp_addrs(k, BP, lane):
    for h, m in enumerate([1, 2, 4, 8, 16, 32]):
        k(f"v_xor_b32 v{BP+h}, {m}, v{lane}")
        k(f"v_lshlrev_b32 v{BP+h}, 2, v{BP+h}")


SUM, TMP, MEAN, RS, BP, RAW = 16, 24, 32, 40, 48, 64
TSTR = 80


def ln_core_packed(k):
    SQ, TMP2 = 112, 120
    k("s_mov_b32 s40, 0x3acccccd")
    k("v_mov_b32 v6, 0x3f803f80")
    for i in range(8):
        k(f"v_mov_b32 v{SUM+i}, 0")
        k(f"v_mov_b32 v{SQ+i}, 0")
    for j in range(5):
        for i in range(8):
            r = RAW + i * 5 + j
            k(f"v_dot2c_f32_bf16 v{SUM+i}, v{r}, v6")
            k(f"v_dot2c_f32_bf16 v{SQ+i}, v{r}, v{r}")
    k("s_nop 2")
    for h in range(6):
        for i in range(8):
            k(f"ds_bpermute_b32 v{TMP+i}, v{BP+h}, v{SUM+i}")
        for i in range(8):
            k(f"ds_bpermute_b32 v{TMP2+i}, v{BP+h}, v{SQ+i}")
        k("s_waitcnt lgkmcnt(8)")
        for i in range(8):
            k(f"v_add_f32 v{SUM+i}, v{SUM+i}, v{TMP+i}")
        k("s_waitcnt lgkmcnt(0)")
        for i in range(8):
            k(f"v_add_f32 v{SQ+i}, v{SQ+i}, v{TMP2+i}")
    for i in range(8):
        k(f"v_mul_f32 v{MEAN+i}, s40, v{SUM+i}")
        k(f"v_mul_f32 v{TMP+i}, s40, v{SQ+i}")
        k(f"v_fma_f32 v{TMP+i}, -v{MEAN+i}, v{MEAN+i}, v{TMP+i}")
        k(f"v_max_f32 v{TMP+i}, 0, v{TMP+i}")
        k(f"v_cvt_pk_bf16_f32 v{TMP+i}, v{TMP+i}, v{MEAN+i}")
        k(f"v_and_b32 v{MEAN+i}, s41, v{TMP+i}")
        k(f"v_lshlrev_b32 v{TMP+i}, 16, v{TMP+i}")
        k(f"v_add_f32 v{TMP+i}, 0x3727c5ac, v{TMP+i}")
        k(f"v_cvt_pk_bf16_f32 v{TMP+i}, v{TMP+i}, v{TMP+i}")
        k(f"v_lshlrev_b32 v{TMP+i}, 16, v{TMP+i}")
    for i in range(8):
        k(f"v_sqrt_f32 v{TMP+i}, v{TMP+i}")
    k("s_nop 0")
    for i in range(8):
        k(f"v_cvt_pk_bf16_f32 v{TMP+i}, v{TMP+i}, v{TMP+i}")
        k(f"v_lshlrev_b32 v{TMP+i}, 16, v{TMP+i}")
    for i in range(8):
        k(f"v_rcp_f32 v{RS+i}, v{TMP+i}")
    k("s_nop 0")


def norm_raw(k, dst, r, i):
    k(f"v_lshlrev_b32 v6, 16, v{r}")
    k(f"v_and_b32 v7, s41, v{r}")
    k(f"v_sub_f32 v6, v6, v{MEAN+i}")
    k(f"v_sub_f32 v7, v7, v{MEAN+i}")
    k(f"v_cvt_pk_bf16_f32 v6, v6, v7")
    k(f"v_and_b32 v7, s41, v6")
    k(f"v_lshlrev_b32 v6, 16, v6")
    k(f"v_mul_f32 v6, v6, v{RS+i}")
    k(f"v_mul_f32 v7, v7, v{RS+i}")
    k(f"v_cvt_pk_bf16_f32 v{dst}, v6, v7")


def tile_out(k, src_regs_fn, ws_base):
    for (j0, j1) in [(0, 5)]:
        for j in range(j0, j1):
            for ip in range(4):
                r0, r1 = src_regs_fn(2 * ip, j), src_regs_fn(2 * ip + 1, j)
                k(f"v_and_b32 v6, 0xffff, v{r0}")
                k(f"v_lshl_or_b32 v{104+ip}, v{r1}, 16, v6")
                k(f"v_lshrrev_b32 v6, 16, v{r0}")
                k(f"v_and_or_b32 v{108+ip}, v{r1}, s41, v6")
            k(f"ds_write_b128 v8, v[104:107] offset:{(j-j0)*128*TSTR}")
            k(f"ds_write_b128 v8, v[108:111] offset:{(j-j0)*128*TSTR + TSTR}")
        k("s_waitcnt lgkmcnt(0)")
        k("s_barrier")
        for it in range(2 * (j1 - j0)):
            k(f"ds_read_b128 v[{104+4*(it%4)}:{107+4*(it%4)}], v9 offset:{it*64*TSTR}")
            k(f"s_mov_b32 s15, {ws_base + (2*j0+it)*64*4096}")
            k("s_waitcnt lgkmcnt(0)")
            k(f"buffer_store_dwordx4 v[{104+4*(it%4)}:{107+4*(it%4)}], v10, s[8:11], s15 offen")
        k("s_barrier")


def role_ln1(k):
    if 'noln1' in EXP:
        k("s_endpgm")
    k("v_and_b32 v1, 63, v0")
    k("v_lshrrev_b32 v2, 6, v0")
    k("s_lshl_b32 s3, s2, 5")
    k("v_lshlrev_b32 v4, 3, v2")
    k("v_add_u32 v4, s3, v4")
    k("s_movk_i32 s12, 1280")
    k("v_mul_lo_u32 v3, v4, s12")
    k("v_lshl_add_u32 v3, v1, 2, v3")
    for i in range(8):
        k(f"s_movk_i32 s13, {i*1280}")
        for j in range(5):
            k(f"buffer_load_dword v{RAW+i*5+j}, v3, s[4:7], s13 offen offset:{j*256}")
    bp_addrs(k, BP, 1)
    k("s_mov_b32 s41, 0xffff0000")
    k(f"v_mul_u32_u24 v8, {2*TSTR}, v1")
    k("v_lshl_add_u32 v8, v2, 4, v8")
    k("v_lshrrev_b32 v9, 2, v0")
    k("v_and_b32 v11, 3, v0")
    k("v_lshlrev_b32 v10, 12, v9")
    k("v_lshl_add_u32 v10, v11, 4, v10")
    k("s_lshl_b32 s3, s2, 6")
    k("v_add_u32 v10, s3, v10")
    k(f"v_mul_u32_u24 v9, {TSTR}, v9")
    k("v_lshl_add_u32 v9, v11, 4, v9")
    k("s_waitcnt vmcnt(0)")
    tile_out(k, lambda i, j: RAW + i * 5 + j, WS_XT)
    ln_core_packed(k)
    for i in range(8):
        for j in range(5):
            norm_raw(k, RAW + i * 5 + j, RAW + i * 5 + j, i)
    tile_out(k, lambda i, j: RAW + i * 5 + j, WS_UT)
    k("s_endpgm")


def role_transpose(k, tag, sreg, R, C, ws_dst, wg_reg):
    if 'notr' in EXP:
        k("s_endpgm")
    ntile_c = C // 64
    magic = (1 << 32) // ntile_c + 1
    k(f"s_mov_b32 s12, {magic}")
    k(f"s_mul_hi_u32 s13, s{wg_reg}, s12")
    k(f"s_mul_i32 s14, s13, {ntile_c}")
    k(f"s_sub_u32 s14, s{wg_reg}, s14")
    k("v_lshrrev_b32 v1, 2, v0")
    k("v_and_b32 v2, 3, v0")
    k("s_lshl_b32 s15, s13, 6")
    k("v_add_u32 v3, s15, v1")
    k(f"s_movk_i32 s16, {C*2}")
    k("v_mul_lo_u32 v3, v3, s16")
    k("s_lshl_b32 s17, s14, 7")
    k("v_lshl_add_u32 v4, v2, 5, s17")
    k("v_add_u32 v3, v3, v4")
    k(f"buffer_load_dwordx4 v[8:11], v3, s[{sreg}:{sreg+3}], 0 offen")
    k(f"buffer_load_dwordx4 v[12:15], v3, s[{sreg}:{sreg+3}], 0 offen offset:16")
    k("s_movk_i32 s18, 2080")
    k("v_mul_lo_u32 v5, v2, s18")
    k("v_lshl_add_u32 v5, v1, 1, v5")
    k("s_waitcnt vmcnt(0)")
    for e in range(16):
        r = 8 + e // 2
        if e % 2 == 0:
            k(f"ds_write_b16 v5, v{r} offset:{e*130}")
        else:
            k(f"ds_write_b16_d16_hi v5, v{r} offset:{e*130}")
    k("s_waitcnt lgkmcnt(0)")
    k("s_barrier")
    k("s_movk_i32 s18, 130")
    k("v_mul_lo_u32 v5, v1, s18")
    k("v_lshl_add_u32 v5, v2, 5, v5")
    k("ds_read_b128 v[8:11], v5")
    k("ds_read_b128 v[12:15], v5 offset:16")
    k("s_lshl_b32 s15, s14, 6")
    k("v_add_u32 v3, s15, v1")
    k(f"s_movk_i32 s16, {R*2}")
    k("v_mul_lo_u32 v3, v3, s16")
    k("s_lshl_b32 s17, s13, 7")
    k("v_lshl_add_u32 v4, v2, 5, s17")
    k("v_add_u32 v3, v3, v4")
    k(f"s_mov_b32 s19, {ws_dst}")
    k("s_waitcnt lgkmcnt(0)")
    k("buffer_store_dwordx4 v[8:11], v3, s[8:11], s19 offen")
    k("buffer_store_dwordx4 v[12:15], v3, s[8:11], s19 offen offset:16")
    k("s_endpgm")


RSTR = 144
ARR = 24 * RSTR
WAVE_LDS = 2 * ARR
TB = 4 * WAVE_LDS
KG_LDS = TB + 8448


def role_kgen(k, ch_reg):
    if 'nokgen' in EXP:
        k("s_endpgm")
    k("v_and_b32 v1, 63, v0")
    k("v_lshrrev_b32 v2, 6, v0")
    k("v_and_b32 v3, 31, v1")
    k("v_lshrrev_b32 v4, 5, v1")
    k(f"s_lshl_b32 s12, s{ch_reg}, 8")
    k("v_lshl_add_u32 v5, v2, 5, v3")
    k("v_lshlrev_b32 v5, 1, v5")
    k("v_add_u32 v5, s12, v5")
    for idx, s in enumerate([20, 24, 28, 32]):
        k(f"buffer_load_ushort v{8+idx}, v5, s[{s}:{s+3}], 0 offen")
    k(f"s_lshl_b32 s12, s{ch_reg}, 1")
    k("v_mov_b32 v6, s12")
    k("buffer_load_ushort v12, v6, s[36:39], 0 offen")
    k(f"v_mul_u32_u24 v20, {WAVE_LDS}, v2")
    k("v_lshl_add_u32 v21, v3, 2, v20")
    k(f"v_mul_u32_u24 v23, {11*RSTR}, v4")
    k("v_add_u32 v21, v21, v23")
    k("v_cvt_f32_u32 v22, v4")
    k("v_lshlrev_b32 v29, 3, v3")
    k("v_cvt_f32_u32 v29, v29")
    k("v_lshlrev_b32 v28, 4, v4")
    k("s_mov_b32 s41, 0xffff0000")
    k("s_mov_b32 s42, 0x3fb8aa3b")
    k("s_waitcnt vmcnt(0)")
    for r in range(8, 13):
        k(f"v_lshlrev_b32 v{r}, 16, v{r}")
    k("v_mul_f32 v12, s42, v12")
    k("v_mul_f32 v8, s42, v8")
    k("v_exp_f32 v12, v12")
    k("v_exp_f32 v8, v8")
    k("s_nop 0")
    k("v_cvt_pk_bf16_f32 v12, v12, v8")
    k("v_and_b32 v8, s41, v12")
    k("v_lshlrev_b32 v12, 16, v12")
    k("v_mul_f32 v8, v8, v12")
    k("v_mul_f32 v8, s42, v8")
    k("v_sub_f32 v8, 0, v8")
    k("v_mul_f32 v9, v9, v12")
    k("v_mul_f32 v9, 0x3e22f983, v9")
    k("v_mul_f32 v10, v10, v12")
    k("v_mul_f32 v11, v11, v12")
    k("v_add_f32 v10, v10, v10")
    k("v_add_f32 v11, v11, v11")
    for s_ in range(4):
        for t in range(4):
            r = 80 + 2 * (4 * s_ + t)
            k(f"ds_bpermute_b32 v{r}, v28, v8 offset:{(8*s_+t)*4}")
            k(f"ds_bpermute_b32 v{r+1}, v28, v9 offset:{(8*s_+t)*4}")
    for t in range(11):
        p0 = HI[t]
        p1 = HI[min(11 + t, 20)]
        k(f"v_mov_b32 v30, {fbits(p0)}")
        k(f"v_fmamk_f32 v30, v22, {fbits(p1 - p0)}, v30")
        k("v_mul_f32 v31, v8, v30")
        k("v_mul_f32 v32, v9, v30")
        k("v_exp_f32 v31, v31")
        k("v_fract_f32 v32, v32")
        k("s_nop 0")
        k("v_cos_f32 v33, v32")
        k("v_sin_f32 v34, v32")
        k("s_nop 0")
        k("v_mul_f32 v36, v10, v33")
        k("v_mul_f32 v37, v10, v34")
        k("v_fma_f32 v36, -v11, v34, v36")
        k("v_fma_f32 v37, v11, v33, v37")
        k("v_mul_f32 v36, v36, v31")
        k("v_mul_f32 v37, v37, -v31")
        k("v_cvt_pk_bf16_f32 v38, v36, v37")
        k("v_lshlrev_b32 v39, 16, v38")
        k("v_and_b32 v40, s41, v38")
        k("v_sub_f32 v36, v36, v39")
        k("v_sub_f32 v37, v37, v40")
        k("v_cvt_pk_bf16_f32 v39, v36, v37")
        k(f"ds_write_b32 v21, v38 offset:{t*RSTR}")
        k(f"ds_write_b32 v21, v39 offset:{t*RSTR + ARR}")
    k("s_waitcnt lgkmcnt(0)")
    k(f"v_mul_u32_u24 v47, {RSTR}, v3")
    k("v_min_u32 v47, %d, v47" % (23 * RSTR))
    k("v_lshl_add_u32 v47, v4, 4, v47")
    k("v_add_u32 v47, v47, v20")
    ACC = 64
    for r in range(16):
        k(f"v_mov_b32 v{ACC+r}, 0")
    for s_ in range(4):
        bh = 48 + 4 * (s_ & 1)
        ah = 112 + 8 * (s_ & 1)
        k(f"ds_read_b128 v[{ah}:{ah+3}], v47 offset:{s_*32}")
        k(f"ds_read_b128 v[{ah+4}:{ah+7}], v47 offset:{ARR + s_*32}")
        for t in range(4):
            r = 80 + 2 * (4 * s_ + t)
            k(f"v_mul_f32 v{31+4*t-0}, v{r}, v29")
            k(f"v_mul_f32 v{32+4*t}, v{r+1}, v29")
        for t in range(4):
            k(f"v_exp_f32 v{31+4*t}, v{31+4*t}")
            k(f"v_fract_f32 v{32+4*t}, v{32+4*t}")
        for t in range(4):
            k(f"v_cos_f32 v{33+4*t}, v{32+4*t}")
            k(f"v_sin_f32 v{34+4*t if t < 3 else 30}, v{32+4*t}")
        k("s_nop 0")
        for t in range(4):
            sn = 34 + 4 * t if t < 3 else 30
            k(f"v_mul_f32 v{33+4*t}, v{33+4*t}, v{31+4*t}")
            k(f"v_mul_f32 v{sn}, v{sn}, v{31+4*t}")
            k(f"v_cvt_pk_bf16_f32 v{bh+t}, v{33+4*t}, v{sn}")
        k("s_waitcnt lgkmcnt(0)")
        k("s_nop 0")
        k(f"v_mfma_f32_32x32x16_bf16 v[{ACC}:{ACC+15}], v[{ah}:{ah+3}], v[{bh}:{bh+3}], v[{ACC}:{ACC+15}]")
        k(f"v_mfma_f32_32x32x16_bf16 v[{ACC}:{ACC+15}], v[{ah+4}:{ah+7}], v[{bh}:{bh+3}], v[{ACC}:{ACC+15}]")
    k("v_lshlrev_b32 v42, 9, v4")
    k("v_lshl_add_u32 v42, v3, 2, v42")
    k("v_add_u32 v42, v42, v20")
    k("s_nop 7")
    k("s_nop 3")
    for r in range(16):
        row0 = 8 * (r >> 2) + (r & 3)
        if row0 < 21:
            k(f"ds_write_b32 v42, v{ACC+r} offset:{row0*128}")
    k("s_waitcnt lgkmcnt(0)")
    k("s_barrier")
    for it in range(3):
        k(f"v_add_u32 v43, {it*256}, v0")
        k("v_lshlrev_b32 v44, 2, v43")
        for w in range(4):
            k(f"ds_read_b32 v{45+w}, v44 offset:{w*WAVE_LDS}")
        k("v_lshrrev_b32 v50, 5, v43")
        k("v_and_b32 v51, 31, v43")
        k("v_mov_b32 v52, v50")
        k("v_subrev_u32 v53, 8, v50")
        k("v_lshlrev_b32 v53, 1, v53")
        k("v_add_u32 v53, 0x100, v53")
        k("v_cmp_le_u32 vcc, 8, v50")
        k("v_subrev_u32 v54, 12, v50")
        k("v_and_b32 v55, 1, v54")
        k("v_cndmask_b32 v52, v52, v53, vcc")
        k("v_lshlrev_b32 v55, 2, v55")
        k("v_lshrrev_b32 v54, 1, v54")
        k("v_lshl_add_u32 v54, v54, 8, v55")
        k("v_add_u32 v54, 0x200, v54")
        k("v_cmp_le_u32 vcc, 12, v50")
        k("v_subrev_u32 v53, 16, v50")
        k("v_lshlrev_b32 v53, 8, v53")
        k("v_cndmask_b32 v52, v52, v54, vcc")
        k("v_add_u32 v53, 0x400, v53")
        k("v_cmp_le_u32 vcc, 16, v50")
        k("s_nop 1")
        k("v_cndmask_b32 v52, v52, v53, vcc")
        k("v_lshl_add_u32 v52, v51, 3, v52")
        k("v_min_u32 v52, 0x801, v52")
        k("v_cmp_gt_u32 vcc, 0x2a0, v43")
        k("v_mov_b32 v53, 0x801")
        k("s_nop 0")
        k("v_cndmask_b32 v52, v53, v52, vcc")
        k("v_lshlrev_b32 v52, 2, v52")
        k("s_waitcnt lgkmcnt(0)")
        k("v_add_f32 v45, v45, v46")
        k("v_add_f32 v47, v47, v48")
        k("v_add_f32 v45, v45, v47")
        k(f"ds_write_b32 v52, v45 offset:{TB}")
    k("s_waitcnt lgkmcnt(0)")
    k("s_barrier")
    k("v_lshlrev_b32 v43, 3, v0")
    k("v_sub_u32 v43, 0x7ff, v43")
    for e in range(8):
        k(f"v_subrev_u32 v44, {e}, v43")
        k("v_cvt_f32_u32 v44, v44")
        k("v_cvt_pk_bf16_f32 v44, v44, v44")
        k("v_lshlrev_b32 v44, 16, v44")
        k("v_cvt_u32_f32 v44, v44")
        k("v_lshlrev_b32 v44, 2, v44")
        k(f"ds_read_b32 v{48+e}, v44 offset:{TB}")
    k(f"s_lshl_b32 s12, s{ch_reg}, 12")
    k(f"s_add_u32 s12, s12, {WS_KB}")
    k("v_lshlrev_b32 v44, 4, v0")
    k("s_waitcnt lgkmcnt(0)")
    for e in range(4):
        k(f"v_cvt_pk_bf16_f32 v{56+e}, v{48+2*e}, v{49+2*e}")
    k("buffer_store_dwordx4 v[56:59], v44, s[8:11], s12 offen")
    k("s_endpgm")


def role_colsum(k, wg_reg):
    k(f"s_mul_i32 s14, s{wg_reg}, 40960")
    k("v_lshlrev_b32 v1, 4, v0")
    for i in range(10):
        k(f"s_add_u32 s16, s14, {i*4096}")
        k(f"buffer_load_dwordx4 v[{32+4*i}:{35+4*i}], v1, s[52:55], s16 offen")
    k(f"s_cmp_ge_u32 s{wg_reg}, 27")
    k("s_cselect_b32 s44, s48, s44")
    k("s_cselect_b32 s45, s49, s45")
    k("s_cselect_b32 s13, 27, 0")
    k(f"s_sub_u32 s13, s{wg_reg}, s13")
    k("v_and_b32 v1, 31, v0")
    k("v_lshrrev_b32 v2, 5, v0")
    k(f"v_mul_u32_u24 v3, {80 * F * 2}, v2")
    k("v_lshl_add_u32 v3, v1, 2, v3")
    k("s_lshl_b32 s14, s13, 7")
    k("v_mov_b32 v4, 0")
    k("v_mov_b32 v5, 0")
    k("s_mov_b32 s41, 0xffff0000")
    k("s_mov_b32 s15, 0")
    k.label("csl")
    for i in range(16):
        k(f"s_add_u32 s16, s14, {i * F * 2}")
        k(f"buffer_load_dword v{8+i}, v3, s[44:47], s16 offen")
    k(f"s_add_u32 s14, s14, {16 * F * 2}")
    for i in range(16):
        k(f"s_waitcnt vmcnt({15-i})")
        k(f"v_lshlrev_b32 v6, 16, v{8+i}")
        k(f"v_and_b32 v7, s41, v{8+i}")
        k("v_add_f32 v4, v4, v6")
        k("v_add_f32 v5, v5, v7")
    k("s_add_u32 s15, s15, 1")
    k("s_cmp_lt_u32 s15, 5")
    k(f"s_cbranch_scc1 {k.L('csl')}")
    k("v_lshlrev_b32 v6, 3, v0")
    k("ds_write_b64 v6, v[4:5]")
    k("s_waitcnt lgkmcnt(0)")
    k("s_barrier")
    k("v_lshlrev_b32 v6, 3, v1")
    for gq in range(8):
        k(f"ds_read_b64 v[{8+2*gq}:{9+2*gq}], v6 offset:{gq*256}")
    k("s_waitcnt lgkmcnt(0)")
    for gq in range(1, 8):
        k(f"v_add_f32 v8, v8, v{8+2*gq}")
        k(f"v_add_f32 v9, v9, v{9+2*gq}")
    k(f"s_lshl_b32 s14, s{wg_reg}, 8")
    k(f"s_add_u32 s14, s14, {WS_CS}")
    k("v_cmp_gt_u32 vcc, 32, v0")
    k("s_and_saveexec_b64 s[16:17], vcc")
    k(f"s_cbranch_execz {k.L('end')}")
    k("buffer_store_dwordx2 v[8:9], v6, s[8:11], s14 offen")
    k("s_endpgm")


def role_touch(k, wg_reg):
    k(f"s_mul_i32 s14, s{wg_reg}, 81920")
    k("v_lshlrev_b32 v1, 4, v0")
    for i in range(20):
        k(f"s_add_u32 s16, s14, {i*4096}")
        k(f"buffer_load_dwordx4 v[{8+4*(i%8)}:{11+4*(i%8)}], v1, s[52:55], s16 offen")
    k("s_waitcnt vmcnt(0)")
    k("s_endpgm")


def gen_prep(name):
    k = K(name, 128)
    NKG, NLN, NCS = 640, 64, 54
    NTO = 0
    total = NKG + NLN + NCS + NTO
    k(f"s_cmp_ge_u32 s2, {total}")
    k(f"s_cbranch_scc1 {k.L('end')}")
    t = [srd(k, 4, KARG['u'], L * D * 2), srd(k, 8, KARG['ws'], WS_SIZE),
         srd(k, 20, KARG['logA'], D * N * 2), srd(k, 24, KARG['Aim'], D * N * 2), srd(k, 28, KARG['Cr'], D * N * 2),
         srd(k, 32, KARG['Ci'], D * N * 2), srd(k, 36, KARG['logdt'], D * 2),
         srd(k, 44, KARG['wg'], D * F * 2), srd(k, 48, KARG['wu'], D * F * 2), srd(k, 52, KARG['wd'], D * F * 2)]
    k("s_waitcnt lgkmcnt(0)")
    for x in t:
        srd_fin(k, x)
    k(f"s_cmp_lt_u32 s2, {NLN}")
    k(f"s_cbranch_scc1 {k.L('ln1')}")
    k(f"s_sub_u32 s56, s2, {NLN}")
    k(f"s_cmp_lt_u32 s56, {NCS}")
    k(f"s_cbranch_scc1 {k.L('cs')}")
    k(f"s_sub_u32 s56, s56, {NCS}")
    k(f"s_cmp_lt_u32 s56, {NTO}")
    k(f"s_cbranch_scc1 {k.L('to')}")
    k(f"s_sub_u32 s56, s56, {NTO}")
    role_kgen(k, 56)
    k.label("to")
    role_touch(k, 56)
    k.label("cs")
    role_colsum(k, 56)
    k.label("ln1")
    role_ln1(k)
    k.label("end")
    k("s_endpgm")
    if 'wgt' in EXP:
        out = []
        for ln in k.lines:
            if ln.strip() == "s_endpgm":
                out.append("    s_branch " + k.L('fin'))
            else:
                out.append(ln)
        k.lines = ["    s_memrealtime s[90:91]"] + out
        k.label("fin")
        k("s_mov_b64 exec, -1")
        k("s_waitcnt vmcnt(0)")
        k("s_memrealtime s[92:93]")
        k("s_load_dwordx2 s[96:97], s[0:1], 104")
        k("s_waitcnt lgkmcnt(0)")
        k("s_and_b32 s97, s97, 0xffff")
        k("s_mov_b32 s98, 0x10000000")
        k("s_mov_b32 s99, 0x20000")
        k("v_mov_b32 v0, s90")
        k("v_mov_b32 v1, s92")
        k("s_lshl_b32 s94, s2, 4")
        k("v_mov_b32 v4, s94")
        k("s_mov_b32 s95, 0x2c00000")
        k("buffer_store_dwordx2 v[0:1], v4, s[96:99], s95 offen")
        k("s_endpgm")
    return k, max(KG_LDS, 640 * TSTR), total


def gen_ln2(name):
    k = K(name, 128)
    total = 64
    k(f"s_cmp_ge_u32 s2, {total}")
    k(f"s_cbranch_scc1 {k.L('end')}")
    t = [srd(k, 8, KARG['ws'], WS_SIZE)]
    k("v_and_b32 v1, 63, v0")
    k("v_lshrrev_b32 v2, 6, v0")
    k("v_lshrrev_b32 v9, 2, v0")
    k("v_and_b32 v11, 3, v0")
    k("v_lshlrev_b32 v10, 12, v9")
    k("v_lshl_add_u32 v10, v11, 4, v10")
    k("s_lshl_b32 s3, s2, 6")
    k("v_add_u32 v10, s3, v10")
    k(f"v_mul_u32_u24 v9, {TSTR}, v9")
    k("v_lshl_add_u32 v9, v11, 4, v9")
    k("s_waitcnt lgkmcnt(0)")
    for x in t:
        srd_fin(k, x)
    for it in range(10):
        k(f"s_mov_b32 s15, {WS_HT + it*64*4096}")
        k(f"buffer_load_dwordx4 v[{RAW+4*it}:{RAW+4*it+3}], v10, s[8:11], s15 offen")
    bp_addrs(k, BP, 1)
    k("s_lshl_b32 s3, s2, 5")
    k("v_lshlrev_b32 v4, 3, v2")
    k("v_add_u32 v4, s3, v4")
    k("s_movk_i32 s12, 1280")
    k("v_mul_lo_u32 v3, v4, s12")
    k("v_lshl_add_u32 v3, v1, 2, v3")
    k(f"v_mul_u32_u24 v8, {2*TSTR}, v1")
    k("v_lshl_add_u32 v8, v2, 4, v8")
    k("s_mov_b32 s41, 0xffff0000")
    for it in range(10):
        k(f"s_waitcnt vmcnt({9-it})")
        k(f"ds_write_b128 v9, v[{RAW+4*it}:{RAW+4*it+3}] offset:{it*64*TSTR}")
    k("s_waitcnt lgkmcnt(0)")
    k("s_barrier")
    for j in range(5):
        k(f"ds_read_b128 v[104:107], v8 offset:{j*128*TSTR}")
        k(f"ds_read_b128 v[108:111], v8 offset:{j*128*TSTR + TSTR}")
        k("s_waitcnt lgkmcnt(0)")
        for ip in range(4):
            k(f"v_and_b32 v6, 0xffff, v{104+ip}")
            k(f"v_lshl_or_b32 v{RAW+(2*ip)*5+j}, v{108+ip}, 16, v6")
            k(f"v_lshrrev_b32 v6, 16, v{104+ip}")
            k(f"v_and_or_b32 v{RAW+(2*ip+1)*5+j}, v{108+ip}, s41, v6")
    for i in range(8):
        k(f"s_mov_b32 s16, {WS_H + i*1280}")
        for j in range(5):
            k(f"buffer_store_dword v{RAW+i*5+j}, v3, s[8:11], s16 offen offset:{j*256}")
    ln_core_packed(k)
    for i in range(8):
        k(f"s_mov_b32 s15, {WS_HL + i*1280}")
        for j in range(5):
            o = 104 + (i * 5 + j) % 8
            norm_raw(k, o, RAW + i * 5 + j, i)
            k(f"buffer_store_dword v{o}, v3, s[8:11], s15 offen offset:{j*256}")
    k.label("end")
    k("s_endpgm")
    return k, 640 * TSTR, total
```

```python
import os
EXP = os.environ.get('EXP', '')
from gen import K, srd, srd_fin, KARG, WS_SIZE, WS_UT, WS_XT, WS_KB, WS_HT, L, D

US = 80
UB = 64 * US
KS0 = 2 * UB
CS = 4160
XCH = KS0 + 8 * CS
LDS_BYTES = XCH + 4096


def gen_conv(name):
    k = K(name, 128)
    k(f"s_cmp_ge_u32 s2, {D}")
    k(f"s_cbranch_scc1 {k.L('end')}")
    t = [srd(k, 4, KARG['ws'], WS_SIZE), srd(k, 8, KARG['dskip'], D * 2)]
    k("v_lshrrev_b32 v2, 6, v0")
    k("v_and_b32 v0, 63, v0")
    k("v_lshlrev_b32 v1, 4, v0")
    k("v_readfirstlane_b32 s22, v2")
    k("s_lshl_b32 s12, s2, 12")
    k("s_waitcnt lgkmcnt(0)")
    for x in t:
        srd_fin(k, x)
    k(f"s_add_u32 s13, s12, {WS_UT}")
    k(f"s_add_u32 s14, s12, {WS_KB}")
    for it in range(4):
        k(f"buffer_load_dwordx4 v[{32+8*it}:{35+8*it}], v1, s[4:7], s14 offen offset:{it*1024}")
        k(f"buffer_load_dwordx4 v[{36+8*it}:{39+8*it}], v1, s[4:7], s14 offen offset:{it*1024+16}")
    k("v_and_b32 v11, 31, v0")
    k("v_lshrrev_b32 v12, 5, v0")
    for r in range(64, 68):
        k(f"v_mov_b32 v{r}, 0")
    k("s_lshl_b32 s15, s2, 1")
    k("v_mov_b32 v2, s15")
    k("buffer_load_ushort v15, v2, s[8:11], 0 offen")
    k("v_lshlrev_b32 v112, 6, v11")
    k("v_lshl_add_u32 v112, v12, 3, v112")
    k("s_min_u32 s23, s22, 1")
    k("s_lshl_b32 s24, s23, 11")
    k(f"s_add_u32 s16, s12, {WS_XT}")
    k("s_add_u32 s16, s16, s24")
    k("s_mul_i32 s17, s2, 4224")
    k(f"s_add_u32 s17, s17, {WS_HT}")
    k("s_add_u32 s17, s17, s24")
    for rq in range(4):
        k(f"buffer_load_dwordx2 v[{96+2*rq}:{97+2*rq}], v112, s[4:7], s16 offen offset:{16*rq}")
    k("s_cmp_eq_u32 s22, 1")
    k(f"s_cbranch_scc1 {k.L('w1')}")
    k("s_cmp_eq_u32 s22, 2")
    k(f"s_cbranch_scc1 {k.L('w2')}")

    def copies(cs):
        k("s_waitcnt vmcnt(5)")
        k("v_cmp_eq_u32 vcc, 63, v0")
        k("s_nop 1")
        for i in range(4):
            k(f"v_cndmask_b32 v{60+i}, v{60+i}, v64, vcc")
        for it in range(4):
            d0 = 32 + 8 * it
            for c in cs:
                s = 7 - c
                off = KS0 + c * CS + it * 1024
                tt = s // 2
                if s % 2 == 0:
                    if (d0 + tt) % 2 == 0:
                        k(f"ds_write_b128 v1, v[{d0+tt}:{d0+tt+3}] offset:{off}")
                    else:
                        for i in range(4):
                            k(f"v_mov_b32 v{68+i}, v{d0+tt+i}")
                        k(f"ds_write_b128 v1, v[68:71] offset:{off}")
                else:
                    tr = 72 + 4 * (c & 1)
                    for i in range(4):
                        k(f"v_alignbit_b32 v{tr+i}, v{d0+tt+i+1}, v{d0+tt+i}, 16")
                    k(f"ds_write_b128 v1, v[{tr}:{tr+3}] offset:{off}")

    def tails(cs):
        k("v_lshrrev_b32 v3, 2, v0")
        k(f"v_mul_u32_u24 v3, {CS}, v3")
        k("v_and_b32 v4, 3, v0")
        k("v_lshl_add_u32 v3, v4, 4, v3")
        k(f"v_cmp_gt_u32 vcc, {4*len(cs)}, v0")
        k("s_and_saveexec_b64 s[20:21], vcc")
        k(f"ds_write_b128 v3, v[64:67] offset:{KS0 + cs[0]*CS + 4096}")
        k("s_mov_b64 exec, s[20:21]")

    for it in range(4):
        k(f"buffer_load_dwordx4 v[{16+4*it}:{19+4*it}], v1, s[4:7], s13 offen offset:{it*1024}")
    tails([0, 1])
    copies([0, 1])
    k("v_lshrrev_b32 v5, 2, v0")
    k(f"v_mul_u32_u24 v5, {US}, v5")
    k("v_and_b32 v6, 3, v0")
    k("v_lshl_add_u32 v5, v6, 4, v5")
    k("s_waitcnt vmcnt(0)")
    for it in range(4):
        k(f"ds_write_b128 v5, v[{16+4*it}:{19+4*it}] offset:{UB + it*16*US}")
    k(f"s_branch {k.L('main')}")
    k.label("w1")
    for it in range(5):
        k(f"ds_write_b128 v1, v[64:67] offset:{it*1024}")
    tails([2, 3, 4])
    copies([2, 3, 4])
    k(f"s_branch {k.L('main')}")
    k.label("w2")
    tails([5, 6, 7])
    copies([5, 6, 7])
    k.label("main")
    k("v_and_b32 v3, 7, v11")
    k(f"v_mul_u32_u24 v13, {CS}, v3")
    k("v_lshrrev_b32 v3, 3, v11")
    k("v_sub_u32 v3, v12, v3")
    k("v_lshl_add_u32 v13, v3, 4, v13")
    k(f"v_add_u32 v13, {KS0 + 4080 - 448}, v13")
    k(f"v_mul_u32_u24 v14, {US}, v11")
    k("v_lshl_add_u32 v14, v12, 4, v14")
    k(f"s_mul_i32 s24, s23, {32*US}")
    k(f"v_add_u32 v113, {UB}, v14")
    k("v_add_u32 v113, s24, v113")
    k("v_lshlrev_b32 v3, 3, v12")
    k("v_sub_u32 v113, v113, v3")
    k(f"v_add_u32 v14, {UB - 7*US}, v14")
    k("v_add_u32 v14, s24, v14")
    k("s_cmp_eq_u32 s22, 2")
    k("s_cselect_b32 s24, 2048, 0")
    k(f"s_cselect_b32 s25, {32*US}, 0")
    k("v_subrev_u32 v13, s24, v13")
    k("v_subrev_u32 v14, s25, v14")
    ACC = 114 - 2
    ACC = 80
    for r in range(16):
        k(f"v_mov_b32 v{ACC+r}, 0")
    k("s_waitcnt lgkmcnt(0)")
    k("s_barrier")

    def reads(j, s):
        b = 16 + 16 * s
        k(f"ds_read_b128 v[{b}:{b+3}], v13 offset:{64*(7-j)}")
        k(f"ds_read_b128 v[{b+4}:{b+7}], v13 offset:{64*(7-j)+32}")
        k(f"ds_read_b128 v[{b+8}:{b+11}], v14 offset:{US*(7-j)}")
        k(f"ds_read_b128 v[{b+12}:{b+15}], v14 offset:{US*(7-j)+32}")

    def mf(s):
        b = 16 + 16 * s
        k(f"v_mfma_f32_32x32x16_bf16 v[{ACC}:{ACC+15}], v[{b}:{b+3}], v[{b+8}:{b+11}], v[{ACC}:{ACC+15}]")
        k(f"v_mfma_f32_32x32x16_bf16 v[{ACC}:{ACC+15}], v[{b+4}:{b+7}], v[{b+12}:{b+15}], v[{ACC}:{ACC+15}]")

    k("s_mov_b32 s18, 0")
    reads(0, 0)
    reads(1, 1)
    k.label("loop")
    for j in range(8):
        jn = j + 2
        if jn < 8:
            reads(jn, jn % 4)
        else:
            if jn == 8:
                k("v_subrev_u32 v13, 512, v13")
                k(f"v_subrev_u32 v14, {8*US}, v14")
                k("v_max_i32 v13, 0, v13")
                k("v_max_i32 v14, 0, v14")
            reads(jn - 8, jn % 4)
        k("s_waitcnt lgkmcnt(8)")
        mf(j % 4)
    k("s_add_u32 s18, s18, 1")
    k("s_cmp_lt_u32 s18, 4")
    k(f"s_cbranch_scc1 {k.L('loop')}")
    k("s_waitcnt lgkmcnt(0)")
    k("s_nop 7")
    k("s_nop 3")
    k("s_cmp_lg_u32 s22, 2")
    k(f"s_cbranch_scc1 {k.L('nb')}")
    for q in range(4):
        k(f"ds_write_b128 v1, v[{ACC+4*q}:{ACC+4*q+3}] offset:{XCH + q*1024}")
    k("s_waitcnt lgkmcnt(0)")
    k("s_barrier")
    k("s_endpgm")
    k.label("nb")
    k("s_barrier")
    k("s_cmp_lg_u32 s22, 1")
    k(f"s_cbranch_scc1 {k.L('ep')}")
    for q in range(4):
        k(f"ds_read_b128 v[{16+4*q}:{19+4*q}], v1 offset:{XCH + q*1024}")
    k("s_waitcnt lgkmcnt(0)")
    for r in range(16):
        k(f"v_add_f32 v{ACC+r}, v{ACC+r}, v{16+r}")
    k.label("ep")
    k("v_lshlrev_b32 v15, 16, v15")
    k("s_mov_b32 s19, 0xffff0000")
    for rq in range(4):
        k(f"ds_read_b64 v[{18+2*rq}:{19+2*rq}], v113 offset:{16*rq}")
    k("s_waitcnt vmcnt(0) lgkmcnt(0)")
    for rq in range(4):
        u = 18 + 2 * rq
        x = 96 + 2 * rq
        for p in range(2):
            acc = ACC + 4 * rq + 2 * p
            k(f"v_lshlrev_b32 v40, 16, v{u+p}")
            k(f"v_and_b32 v41, s19, v{u+p}")
            k("v_mul_f32 v40, v40, v15")
            k("v_mul_f32 v41, v41, v15")
            k("v_cvt_pk_bf16_f32 v40, v40, v41")
            k(f"v_cvt_pk_bf16_f32 v42, v{acc}, v{acc+1}")
            k("v_lshlrev_b32 v41, 16, v40")
            k("v_and_b32 v40, s19, v40")
            k("v_lshlrev_b32 v43, 16, v42")
            k("v_and_b32 v42, s19, v42")
            k("v_add_f32 v41, v41, v43")
            k("v_add_f32 v40, v40, v42")
            k("v_cvt_pk_bf16_f32 v42, v41, v40")
            k(f"v_lshlrev_b32 v41, 16, v{x+p}")
            k(f"v_and_b32 v40, s19, v{x+p}")
            k("v_lshlrev_b32 v43, 16, v42")
            k("v_and_b32 v42, s19, v42")
            k("v_add_f32 v41, v41, v43")
            k("v_add_f32 v40, v40, v42")
            k(f"v_cvt_pk_bf16_f32 v{x+p}, v41, v40")
        k(f"buffer_store_dwordx2 v[{x}:{x+1}], v112, s[4:7], s17 offen offset:{16*rq}")
    k.label("end")
    k("s_endpgm")
    return k, LDS_BYTES
```

```python
import os
EXP = os.environ.get('EXP', '')
from gen import K, srd, srd_fin, KARG, WS_SIZE, WS_UT, WS_XT, WS_KB, WS_HT, WS_S1, L, D

US = 80
UB = 64 * US
KS0 = 2 * UB
CS = 4160
XCH = KS0 + 8 * CS
LDS_BYTES = XCH + 4096


def gen_conv(name):
    k = K(name, 128)
    k(f"s_cmp_ge_u32 s2, {D}")
    k(f"s_cbranch_scc1 {k.L('end')}")
    t = [srd(k, 4, KARG['ws'], WS_SIZE), srd(k, 8, KARG['dskip'], D * 2)]
    k("v_lshrrev_b32 v2, 6, v0")
    k("v_and_b32 v0, 63, v0")
    k("v_lshlrev_b32 v1, 4, v0")
    k("v_readfirstlane_b32 s22, v2")
    k("s_lshl_b32 s12, s2, 12")
    k("s_waitcnt lgkmcnt(0)")
    for x in t:
        srd_fin(k, x)
    k(f"s_add_u32 s13, s12, {WS_UT}")
    k(f"s_add_u32 s14, s12, {WS_KB}")
    for it in range(4):
        k(f"buffer_load_dwordx4 v[{32+8*it}:{35+8*it}], v1, s[4:7], s14 offen offset:{it*1024}")
        k(f"buffer_load_dwordx4 v[{36+8*it}:{39+8*it}], v1, s[4:7], s14 offen offset:{it*1024+16}")
    k("v_and_b32 v11, 31, v0")
    k("v_lshrrev_b32 v12, 5, v0")
    for r in range(64, 68):
        k(f"v_mov_b32 v{r}, 0")
    k("s_lshl_b32 s15, s2, 1")
    k("v_mov_b32 v2, s15")
    k("buffer_load_ushort v15, v2, s[8:11], 0 offen")
    k("v_lshlrev_b32 v112, 6, v11")
    k("v_lshl_add_u32 v112, v12, 3, v112")
    k("s_min_u32 s23, s22, 1")
    k("s_lshl_b32 s24, s23, 11")
    k(f"s_add_u32 s16, s12, {WS_XT}")
    k("s_add_u32 s16, s16, s24")
    k("s_mul_i32 s17, s2, 4224")
    k(f"s_add_u32 s17, s17, {WS_HT}")
    k("s_add_u32 s17, s17, s24")
    for rq in range(4):
        k(f"buffer_load_dwordx2 v[{116+2*rq}:{117+2*rq}], v112, s[4:7], s16 offen offset:{16*rq}")
    k("s_cmp_eq_u32 s22, 1")
    k(f"s_cbranch_scc1 {k.L('w1')}")
    k("s_cmp_eq_u32 s22, 2")
    k(f"s_cbranch_scc1 {k.L('w2')}")

    def copies(cs):
        k("s_waitcnt vmcnt(10)")
        k("v_cmp_eq_u32 vcc, 63, v0")
        k("s_nop 1")
        for i in range(4):
            k(f"v_cndmask_b32 v{60+i}, v{60+i}, v64, vcc")
        for it in range(4):
            d0 = 32 + 8 * it
            for c in cs:
                s = 7 - c
                off = KS0 + c * CS + it * 1024
                tt = s // 2
                if s % 2 == 0:
                    if (d0 + tt) % 2 == 0:
                        k(f"ds_write_b128 v1, v[{d0+tt}:{d0+tt+3}] offset:{off}")
                    else:
                        for i in range(4):
                            k(f"v_mov_b32 v{68+i}, v{d0+tt+i}")
                        k(f"ds_write_b128 v1, v[68:71] offset:{off}")
                else:
                    tr = 72 + 4 * (c & 1)
                    for i in range(4):
                        k(f"v_alignbit_b32 v{tr+i}, v{d0+tt+i+1}, v{d0+tt+i}, 16")
                    k(f"ds_write_b128 v1, v[{tr}:{tr+3}] offset:{off}")

    def tails(cs):
        k("v_lshrrev_b32 v3, 2, v0")
        k(f"v_mul_u32_u24 v3, {CS}, v3")
        k("v_and_b32 v4, 3, v0")
        k("v_lshl_add_u32 v3, v4, 4, v3")
        k(f"v_cmp_gt_u32 vcc, {4*len(cs)}, v0")
        k("s_and_saveexec_b64 s[20:21], vcc")
        k(f"ds_write_b128 v3, v[64:67] offset:{KS0 + cs[0]*CS + 4096}")
        k("s_mov_b64 exec, s[20:21]")

    def uload(its):
        k(f"s_add_u32 s13, s12, {WS_XT}")
        k("v_lshlrev_b32 v7, 6, v0")
        for n_, it in enumerate(its):
            k(f"buffer_load_dwordx4 v[{16+4*n_}:{19+4*n_}], v1, s[4:7], s13 offen offset:{it*1024}")
            k(f"s_mov_b32 s26, {WS_S1 + it*4096}")
            for q in range(4):
                r = 104 - 0 + 0
                k(f"buffer_load_dwordx4 v[{(116 if n_ == 0 else 80)+4*q - (0 if n_ == 0 else 0)}:{(116 if n_ == 0 else 80)+4*q+3}], v7, s[4:7], s26 offen offset:{16*q}") if False else None
                base = 80 + 16 * n_
                k(f"buffer_load_dwordx4 v[{base+4*q}:{base+4*q+3}], v7, s[4:7], s26 offen offset:{16*q}")

    def ucompute(its):
        k("v_lshrrev_b32 v5, 2, v0")
        k(f"v_mul_u32_u24 v5, {US}, v5")
        k("v_and_b32 v6, 3, v0")
        k("v_lshl_add_u32 v5, v6, 4, v5")
        k("s_mov_b32 s19, 0xffff0000")
        k("s_waitcnt vmcnt(0)")
        for n_, it in enumerate(its):
            base = 80 + 16 * n_
            for d_ in range(4):
                r = 16 + 4 * n_ + d_
                m0, r0, m1, r1 = base + 4 * d_, base + 4 * d_ + 1, base + 4 * d_ + 2, base + 4 * d_ + 3
                k(f"v_lshlrev_b32 v8, 16, v{r}")
                k(f"v_and_b32 v9, s19, v{r}")
                k(f"v_sub_f32 v8, v8, v{m0}")
                k(f"v_sub_f32 v9, v9, v{m1}")
                k("v_cvt_pk_bf16_f32 v8, v8, v9")
                k("v_and_b32 v9, s19, v8")
                k("v_lshlrev_b32 v8, 16, v8")
                k(f"v_mul_f32 v8, v8, v{r0}")
                k(f"v_mul_f32 v9, v9, v{r1}")
                k(f"v_cvt_pk_bf16_f32 v{r}, v8, v9")
            k(f"ds_write_b128 v5, v[{16+4*n_}:{19+4*n_}] offset:{UB + it*16*US}")

    uload([0, 1])
    tails([0, 1])
    copies([0, 1])
    ucompute([0, 1])
    k(f"s_branch {k.L('main')}")
    k.label("w1")
    uload([2])
    for it in range(5):
        k(f"ds_write_b128 v1, v[64:67] offset:{it*1024}")
    tails([2, 3, 4])
    copies([2, 3, 4])
    ucompute([2])
    k(f"s_branch {k.L('main')}")
    k.label("w2")
    uload([3])
    tails([5, 6, 7])
    copies([5, 6, 7])
    ucompute([3])
    k.label("main")
    k("v_and_b32 v3, 7, v11")
    k(f"v_mul_u32_u24 v13, {CS}, v3")
    k("v_lshrrev_b32 v3, 3, v11")
    k("v_sub_u32 v3, v12, v3")
    k("v_lshl_add_u32 v13, v3, 4, v13")
    k(f"v_add_u32 v13, {KS0 + 4080 - 448}, v13")
    k(f"v_mul_u32_u24 v14, {US}, v11")
    k("v_lshl_add_u32 v14, v12, 4, v14")
    k(f"s_mul_i32 s24, s23, {32*US}")
    k(f"v_add_u32 v113, {UB}, v14")
    k("v_add_u32 v113, s24, v113")
    k("v_lshlrev_b32 v3, 3, v12")
    k("v_sub_u32 v113, v113, v3")
    k(f"v_add_u32 v14, {UB - 7*US}, v14")
    k("v_add_u32 v14, s24, v14")
    k("s_cmp_eq_u32 s22, 2")
    k("s_cselect_b32 s24, 2048, 0")
    k(f"s_cselect_b32 s25, {32*US}, 0")
    k("v_subrev_u32 v13, s24, v13")
    k("v_subrev_u32 v14, s25, v14")
    ACC = 114 - 2
    ACC = 80
    for r in range(16):
        k(f"v_mov_b32 v{ACC+r}, 0")
    k("s_waitcnt lgkmcnt(0)")
    k("s_barrier")

    def reads(j, s):
        b = 16 + 16 * s
        k(f"ds_read_b128 v[{b}:{b+3}], v13 offset:{64*(7-j)}")
        k(f"ds_read_b128 v[{b+4}:{b+7}], v13 offset:{64*(7-j)+32}")
        k(f"ds_read_b128 v[{b+8}:{b+11}], v14 offset:{US*(7-j)}")
        k(f"ds_read_b128 v[{b+12}:{b+15}], v14 offset:{US*(7-j)+32}")

    def mf(s):
        b = 16 + 16 * s
        k(f"v_mfma_f32_32x32x16_bf16 v[{ACC}:{ACC+15}], v[{b}:{b+3}], v[{b+8}:{b+11}], v[{ACC}:{ACC+15}]")
        k(f"v_mfma_f32_32x32x16_bf16 v[{ACC}:{ACC+15}], v[{b+4}:{b+7}], v[{b+12}:{b+15}], v[{ACC}:{ACC+15}]")

    k("s_mov_b32 s18, 0")
    reads(0, 0)
    reads(1, 1)
    k.label("loop")
    for j in range(8):
        jn = j + 2
        if jn < 8:
            reads(jn, jn % 4)
        else:
            if jn == 8:
                k("v_subrev_u32 v13, 512, v13")
                k(f"v_subrev_u32 v14, {8*US}, v14")
                k("v_max_i32 v13, 0, v13")
                k("v_max_i32 v14, 0, v14")
            reads(jn - 8, jn % 4)
        k("s_waitcnt lgkmcnt(8)")
        mf(j % 4)
    k("s_add_u32 s18, s18, 1")
    k("s_cmp_lt_u32 s18, 4")
    k(f"s_cbranch_scc1 {k.L('loop')}")
    k("s_waitcnt lgkmcnt(0)")
    k("s_nop 7")
    k("s_nop 3")
    k("s_cmp_lg_u32 s22, 2")
    k(f"s_cbranch_scc1 {k.L('nb')}")
    for q in range(4):
        k(f"ds_write_b128 v1, v[{ACC+4*q}:{ACC+4*q+3}] offset:{XCH + q*1024}")
    k("s_waitcnt lgkmcnt(0)")
    k("s_barrier")
    k("s_endpgm")
    k.label("nb")
    k("s_barrier")
    k("s_cmp_lg_u32 s22, 1")
    k(f"s_cbranch_scc1 {k.L('ep')}")
    for q in range(4):
        k(f"ds_read_b128 v[{16+4*q}:{19+4*q}], v1 offset:{XCH + q*1024}")
    k("s_waitcnt lgkmcnt(0)")
    for r in range(16):
        k(f"v_add_f32 v{ACC+r}, v{ACC+r}, v{16+r}")
    k.label("ep")
    k("v_lshlrev_b32 v15, 16, v15")
    k("s_mov_b32 s19, 0xffff0000")
    for rq in range(4):
        k(f"ds_read_b64 v[{18+2*rq}:{19+2*rq}], v113 offset:{16*rq}")
    k("s_waitcnt vmcnt(0) lgkmcnt(0)")
    for rq in range(4):
        u = 18 + 2 * rq
        x = 116 + 2 * rq
        for p in range(2):
            acc = ACC + 4 * rq + 2 * p
            k(f"v_lshlrev_b32 v40, 16, v{u+p}")
            k(f"v_and_b32 v41, s19, v{u+p}")
            k("v_mul_f32 v40, v40, v15")
            k("v_mul_f32 v41, v41, v15")
            k("v_cvt_pk_bf16_f32 v40, v40, v41")
            k(f"v_cvt_pk_bf16_f32 v42, v{acc}, v{acc+1}")
            k("v_lshlrev_b32 v41, 16, v40")
            k("v_and_b32 v40, s19, v40")
            k("v_lshlrev_b32 v43, 16, v42")
            k("v_and_b32 v42, s19, v42")
            k("v_add_f32 v41, v41, v43")
            k("v_add_f32 v40, v40, v42")
            k("v_cvt_pk_bf16_f32 v42, v41, v40")
            k(f"v_lshlrev_b32 v41, 16, v{x+p}")
            k(f"v_and_b32 v40, s19, v{x+p}")
            k("v_lshlrev_b32 v43, 16, v42")
            k("v_and_b32 v42, s19, v42")
            k("v_add_f32 v41, v41, v43")
            k("v_add_f32 v40, v40, v42")
            k(f"v_cvt_pk_bf16_f32 v{x+p}, v41, v40")
        k(f"buffer_store_dwordx2 v[{x}:{x+1}], v112, s[4:7], s17 offen offset:{16*rq}")
    k.label("end")
    k("s_endpgm")
    return k, LDS_BYTES
```

```python
import os
EXP = os.environ.get('EXP', '')
from gen import K, srd, srd_fin, KARG, WS_SIZE, WS_HT, WS_HA, WS_CS, WS_ST, L, D, F
HTP = 4224


def gen_gemm1(name):
    NS = int(os.environ.get("G1NS","4"))
    nk = 20
    NST = 32
    nwg = 16 * 27 + NST
    WRB = F * 2
    SUB = 4096
    STAGE = 4 * SUB
    LPW = 4
    k = K(name, 240)
    k(f"s_cmp_ge_u32 s2, {nwg}")
    k(f"s_cbranch_scc1 {k.L('end')}")
    t = [srd(k, 4, KARG['ws'], WS_SIZE), srd(k, 44, KARG['wg'], D * F * 2), srd(k, 48, KARG['wu'], D * F * 2), srd(k, 52, KARG['dbg'], 256)]
    k(f"s_cmp_lt_u32 s2, {NST}")
    k(f"s_cbranch_scc1 {k.L('stats')}")
    k(f"s_sub_u32 s2, s2, {NST}")
    if 'stamp' in EXP:
        k("s_memtime s[60:61]")
    if 'wgtg' in EXP:
        k("s_memrealtime s[60:61]")
    k("v_lshrrev_b32 v1, 6, v0")
    k("v_and_b32 v2, 63, v0")
    k("s_and_b32 s12, s2, 7")
    k("s_mul_i32 s12, s12, 54")
    k("s_lshr_b32 s13, s2, 3")
    k("s_add_u32 s3, s12, s13")
    k("s_and_b32 s12, s3, 15")
    k("v_readfirstlane_b32 s14, v1")
    k("s_lshr_b32 s13, s3, 4")
    k("v_lshrrev_b32 v4, 4, v2")
    k("v_and_b32 v4, 1, v4")
    k("v_lshlrev_b32 v4, 2, v4")
    k("v_and_b32 v5, 7, v2")
    k("v_xor_b32 v19, v4, v5")
    k("v_lshrrev_b32 v3, 3, v2")
    k(f"v_mul_u32_u24 v4, {WRB}, v3")
    k("v_lshl_add_u32 v8, v19, 4, v4")
    k(f"v_add_u32 v9, {8 * WRB - 1024}, v8")
    k(f"v_mul_u32_u24 v4, {HTP}, v3")
    k("v_lshl_add_u32 v6, v19, 4, v4")
    k(f"v_add_u32 v7, {8 * HTP - 1024}, v6")
    k("s_waitcnt lgkmcnt(0)")
    for x in t:
        srd_fin(k, x)
    k("s_lshr_b32 s17, s14, 1")
    k("s_and_b32 s18, s14, 1")
    k("s_lshl_b32 s16, s12, 8")
    k("s_lshl_b32 s15, s17, 7")
    k("s_add_u32 s16, s16, s15")
    k(f"s_mul_i32 s15, s18, {16 * HTP}")
    k("s_add_u32 s16, s16, s15")
    k(f"s_add_u32 s16, s16, {WS_HT}")
    k("s_cmp_eq_u32 s17, 0")
    k("s_cselect_b32 s44, s44, s48")
    k("s_cselect_b32 s45, s45, s49")
    k(f"s_mul_i32 s17, s18, {16 * WRB}")
    k("s_lshl_b32 s15, s13, 7")
    k("s_add_u32 s17, s17, s15")
    k("s_lshl_b32 s19, s14, 11")
    k(f"s_add_u32 s20, s19, {2 * SUB}")

    def issue_stage(st):
        so = st * STAGE
        k(f"s_add_u32 m0, s19, {so}")
        k("s_nop 0")
        for i in range(2):
            k(f"buffer_load_dwordx4 v{6+i}, s[4:7], s16 offen offset:{i*1024} lds")
        k(f"s_add_u32 m0, s20, {so}")
        k(f"s_add_u32 s16, s16, {32 * HTP}")
        for i in range(2):
            k(f"buffer_load_dwordx4 v{8+i}, s[44:47], s17 offen offset:{i*1024} lds")
        k(f"s_add_u32 s17, s17, {32 * WRB}")

    for st in range(NS - 1):
        issue_stage(st)
    k("v_and_b32 v10, 31, v2")
    k("v_lshrrev_b32 v11, 5, v2")
    k("v_and_b32 v12, 1, v1")
    k("v_lshrrev_b32 v13, 1, v1")
    k("v_and_b32 v14, 15, v2")
    k("v_lshrrev_b32 v14, 2, v14")
    k("v_lshl_add_u32 v14, v11, 3, v14")
    k("v_lshlrev_b32 v14, 7, v14")
    k("v_lshrrev_b32 v3, 4, v2")
    k("v_and_b32 v3, 1, v3")
    k("v_lshlrev_b32 v3, 1, v3")
    k("v_and_b32 v4, 3, v2")
    k("v_lshrrev_b32 v4, 1, v4")
    k("v_add_u32 v3, v3, v4")
    k("v_lshrrev_b32 v4, 3, v2")
    k("v_and_b32 v4, 1, v4")
    k("v_lshlrev_b32 v4, 2, v4")
    k("v_xor_b32 v3, v3, v4")
    k("v_lshl_add_u32 v14, v3, 4, v14")
    k("v_and_b32 v4, 1, v2")
    k("v_lshl_add_u32 v14, v4, 3, v14")
    k("v_lshlrev_b32 v3, 6, v13")
    k("v_xor_b32 v22, v3, v14")
    k(f"v_add_u32 v22, {2 * SUB}, v22")
    k("v_lshl_add_u32 v20, v12, 12, v14")
    k("v_xor_b32 v21, 64, v20")
    for i in range(3):
        k(f"v_add_u32 v{232+i}, 0x10000, v{20+i}")
    FR = 24
    ACC = 56
    HR = 120
    S1, S2 = 128, 144
    CS = 160
    for r in range(64):
        k(f"v_mov_b32 v{ACC+r}, 0")
    for r in range(32):
        k(f"v_mov_b32 v{S1+r}, 0")
    for r in range(4):
        k(f"v_mov_b32 v{HR+4+r}, 0x3f803f80")
    k("s_lshl_b32 s22, s12, 7")
    k("v_lshl_add_u32 v17, v12, 6, v10")
    k("v_add_u32 v17, s22, v17")
    k("s_lshl_b32 s22, s13, 6")
    k("v_lshlrev_b32 v18, 5, v13")
    k("v_lshl_add_u32 v18, v11, 2, v18")
    k("v_add_u32 v18, s22, v18")
    k("v_lshlrev_b32 v3, 2, v18")
    k(f"s_mov_b32 s27, {WS_CS}")
    k(f"s_mov_b32 s28, {WS_CS + F*4}")
    for wi in range(2):
        for rq in range(4):
            r = CS + 16 * wi + 4 * rq
            k(f"buffer_load_dwordx4 v[{r}:{r+3}], v3, s[4:7], s{27+wi} offen offset:{rq*32}")
    k("s_lshr_b32 s31, s14, 1")
    k(f"s_movk_i32 s26, {F*2}")
    k("v_mul_lo_u32 v17, v17, s26")
    k("v_lshl_add_u32 v17, v18, 1, v17")
    cnt = [0]

    def reads(st, kk):
        b = FR + 16 * kk
        so = st * STAGE + kk * 2048
        ab = 20
        if st >= 4:
            so -= 65536
            ab = 232
        for wi in range(2):
            for hh in range(2):
                k(f"ds_read_b64_tr_b16 v[{b+4*wi+2*hh}:{b+4*wi+2*hh+1}], v{ab+2} offset:{so + wi*SUB + hh*512}")
        for xi in range(2):
            for hh in range(2):
                k(f"ds_read_b64_tr_b16 v[{b+8+4*xi+2*hh}:{b+8+4*xi+2*hh+1}], v{ab+xi} offset:{so + hh*512}")

    def mfmas(kk):
        b = FR + 16 * kk
        for wi in range(2):
            for xi in range(2):
                a = ACC + (wi * 2 + xi) * 16
                k(f"v_mfma_f32_32x32x16_bf16 v[{a}:{a+15}], v[{b+4*wi}:{b+4*wi+3}], v[{b+8+4*xi}:{b+8+4*xi+3}], v[{a}:{a+15}]")

    def body(st):
        reads(st, 1)
        k("s_waitcnt lgkmcnt(8)")
        mfmas(0)
        k(f"s_waitcnt vmcnt({(NS - 3) * LPW})")
        k("s_barrier")
        issue_stage((st + NS - 1) % NS)
        reads((st + 1) % NS, 0)
        k("s_waitcnt lgkmcnt(8)")
        mfmas(1)

    k(f"s_waitcnt vmcnt({(NS - 2) * LPW + 8})")
    k("s_barrier")
    if 'stamp' in EXP:
        k("s_memtime s[62:63]")
    reads(0, 0)
    T = nk - 1
    P = T % NS
    for i in range(P):
        body(i % NS)
    k(f"s_mov_b32 s39, {T // NS}")
    k.label("loop")
    for j in range(NS):
        body((P + j) % NS)
    k("s_sub_u32 s39, s39, 1")
    k("s_cmp_lg_u32 s39, 0")
    k(f"s_cbranch_scc1 {k.L('loop')}")
    st = T % NS
    reads(st, 1)
    k("s_waitcnt lgkmcnt(8)")
    mfmas(0)
    k("s_waitcnt lgkmcnt(0)")
    mfmas(1)
    if 'stamp' in EXP:
        k("s_memtime s[64:65]")
    k("s_mov_b32 s25, 0xffff0000")
    k("s_lshl_b32 s32, s12, 3")
    k("v_mov_b32 v3, s32")
    k.label("poll")
    k("buffer_load_dwordx2 v[24:25], v3, s[52:55], 0 offen sc1")
    k("s_waitcnt vmcnt(0)")
    k("v_and_b32 v24, v24, v25")
    k("s_nop 0")
    k("v_readfirstlane_b32 s33, v24")
    k("s_nop 3")
    k("s_cmp_eq_u32 s33, 1")
    k(f"s_cbranch_scc1 {k.L('pollok')}")
    k("s_sleep 2")
    k(f"s_branch {k.L('poll')}")
    k.label("pollok")
    k("s_lshl_b32 s32, s12, 7")
    k("v_lshl_add_u32 v3, v12, 6, v10")
    k("v_add_u32 v3, s32, v3")
    k("v_lshlrev_b32 v3, 3, v3")
    k(f"s_mov_b32 s32, {WS_ST}")
    k("buffer_load_dwordx2 v[24:25], v3, s[4:7], s32 offen sc1")
    k("buffer_load_dwordx2 v[26:27], v3, s[4:7], s32 offen offset:256 sc1")
    k("s_waitcnt vmcnt(0)")
    k("s_mov_b32 s40, 0x3acccccd")
    k("s_waitcnt lgkmcnt(0)")
    for xi in range(2):
        k(f"v_mul_f32 v5, s40, v{24+2*xi}")
        k(f"v_mul_f32 v6, s40, v{25+2*xi}")
        k("v_fma_f32 v6, -v5, v5, v6")
        k("v_max_f32 v6, 0, v6")
        k("v_cvt_pk_bf16_f32 v6, v6, v5")
        k(f"v_and_b32 v{HR+xi}, s25, v6")
        k("v_lshlrev_b32 v6, 16, v6")
        k("v_add_f32 v6, 0x3727c5ac, v6")
        k("v_cvt_pk_bf16_f32 v6, v6, v6")
        k("v_lshlrev_b32 v6, 16, v6")
        k("v_sqrt_f32 v6, v6")
        k("s_nop 0")
        k("v_cvt_pk_bf16_f32 v6, v6, v6")
        k("v_lshlrev_b32 v6, 16, v6")
        k(f"v_rcp_f32 v{HR+2+xi}, v6")
    k(f"s_mov_b32 s27, {WS_HA}")
    k(f"s_add_u32 s28, s27, {32*F*2}")
    k("v_mov_b32 v19, 0x3d372713")
    k("v_mov_b32 v20, 0x40135761")
    T0 = 192
    for xi in range(2):
        k(f"v_sub_f32 v{216+2*xi}, 0, v{HR+xi}")
        k(f"v_sub_f32 v{217+2*xi}, 0, v{HR+xi}")
        k(f"v_mov_b32 v{220+2*xi}, v{HR+2+xi}")
        k(f"v_mov_b32 v{221+2*xi}, v{HR+2+xi}")
    k("v_mov_b32 v224, 0x3d372713")
    k("v_mov_b32 v225, 0x3d372713")
    k("v_mov_b32 v226, 0x40135761")
    k("v_mov_b32 v227, 0x40135761")
    for xi in range(2):
        nm = f"v[{216+2*xi}:{217+2*xi}]"
        rsp = f"v[{220+2*xi}:{221+2*xi}]"
        for rq in range(4):
            for p2 in range(2):
                ga = ACC + xi * 16 + 4 * rq + 2 * p2
                ua = ACC + (2 + xi) * 16 + 4 * rq + 2 * p2
                cg = CS + 4 * rq + 2 * p2
                cu = CS + 16 + 4 * rq + 2 * p2
                k(f"v_pk_fma_f32 v[{ga}:{ga+1}], {nm}, v[{cg}:{cg+1}], v[{ga}:{ga+1}]")
                k(f"v_pk_fma_f32 v[{ua}:{ua+1}], {nm}, v[{cu}:{cu+1}], v[{ua}:{ua+1}]")
                k(f"v_pk_mul_f32 v[{ga}:{ga+1}], v[{ga}:{ga+1}], {rsp}")
                k(f"v_pk_mul_f32 v[{ua}:{ua+1}], v[{ua}:{ua+1}], {rsp}")
                g0 = T0 + 2 * p2
                u0 = T0 + 4 + 2 * p2
                z0 = T0 + 8 + 2 * p2
                k(f"v_cvt_pk_bf16_f32 v{z0}, v{ga}, v{ga+1}")
                k(f"v_cvt_pk_bf16_f32 v{z0+1}, v{ua}, v{ua+1}")
                k(f"v_lshlrev_b32 v{g0}, 16, v{z0}")
                k(f"v_and_b32 v{g0+1}, s25, v{z0}")
                k(f"v_lshlrev_b32 v{u0}, 16, v{z0+1}")
                k(f"v_and_b32 v{u0+1}, s25, v{z0+1}")
                k(f"v_pk_mul_f32 v[{z0}:{z0+1}], v[{g0}:{g0+1}], v[{g0}:{g0+1}]")
                k(f"v_pk_mul_f32 v[{z0}:{z0+1}], v[{z0}:{z0+1}], v[224:225]")
                k(f"v_pk_fma_f32 v[{z0}:{z0+1}], v[{z0}:{z0+1}], v[{g0}:{g0+1}], v[{g0}:{g0+1}]")
                k(f"v_pk_mul_f32 v[{z0}:{z0+1}], v[{z0}:{z0+1}], v[226:227]")
            for e in range(4):
                k(f"v_exp_f32 v{T0+8+e}, v{T0+8+e}")
            k("s_nop 0")
            for e in range(4):
                k(f"v_add_f32 v{T0+8+e}, 1.0, v{T0+8+e}")
            for e in range(4):
                k(f"v_rcp_f32 v{T0+8+e}, v{T0+8+e}")
            k("s_nop 0")
            o = 208 + 2 * ((xi * 4 + rq) & 3)
            for p2 in range(2):
                g0 = T0 + 2 * p2
                u0 = T0 + 4 + 2 * p2
                z0 = T0 + 8 + 2 * p2
                k(f"v_pk_fma_f32 v[{z0}:{z0+1}], v[{g0}:{g0+1}], v[{z0}:{z0+1}], v[{g0}:{g0+1}] neg_lo:[1,0,0] neg_hi:[1,0,0]")
                k(f"v_cvt_pk_bf16_f32 v{z0}, v{z0}, v{z0+1}")
                k(f"v_and_b32 v{z0+1}, s25, v{z0}")
                k(f"v_lshlrev_b32 v{z0}, 16, v{z0}")
                k(f"v_pk_mul_f32 v[{z0}:{z0+1}], v[{z0}:{z0+1}], v[{u0}:{u0+1}]")
                k(f"v_cvt_pk_bf16_f32 v{o+p2}, v{z0}, v{z0+1}")
            k(f"buffer_store_dwordx2 v[{o}:{o+1}], v17, s[4:7], s{27+xi} offen offset:{rq*16}")
    if 'stamp' in EXP:
        k("s_waitcnt vmcnt(0)")
        k("s_memtime s[66:67]")
        k("s_load_dwordx2 s[68:69], s[0:1], 96")
        k("s_waitcnt lgkmcnt(0)")
        k("s_and_b32 s69, s69, 0xffff")
        k("s_movk_i32 s70, 256")
        k("s_mov_b32 s71, 0x20000")
        k("s_sub_u32 s62, s62, s60")
        k("s_sub_u32 s64, s64, s60")
        k("s_sub_u32 s66, s66, s60")
        k("v_mov_b32 v1, s62")
        k("v_mov_b32 v2, s64")
        k("v_mov_b32 v3, s66")
        k("v_mov_b32 v0, 0")
        k("s_cmp_lg_u32 s2, 37")
        k(f"s_cbranch_scc1 {k.L('end')}")
        k("buffer_store_dwordx4 v[0:3], v0, s[68:71], 0 offen")
    if 'wgtg' in EXP:
        k("s_waitcnt vmcnt(0)")
        k("s_memrealtime s[62:63]")
        k("s_getreg_b32 s64, hwreg(HW_REG_HW_ID)")
        k("s_waitcnt lgkmcnt(0)")
        k("v_mov_b32 v0, s60")
        k("v_mov_b32 v1, s62")
        k("v_mov_b32 v2, s64")
        k("v_mov_b32 v3, 0")
        k("s_lshl_b32 s65, s2, 4")
        k("v_mov_b32 v4, s65")
        k("s_mov_b32 s66, 0x2c00000")
        k("buffer_store_dwordx4 v[0:3], v4, s[4:7], s66 offen")
    k("s_endpgm")
    k.label("stats")
    k("s_waitcnt lgkmcnt(0)")
    for x in t:
        srd_fin(k, x)
    k("v_and_b32 v1, 31, v0")
    k("v_lshrrev_b32 v2, 5, v0")
    k(f"v_mul_u32_u24 v3, {80 * HTP}, v2")
    k("v_lshl_add_u32 v3, v1, 2, v3")
    k("s_lshl_b32 s14, s2, 7")
    k(f"s_add_u32 s14, s14, {WS_HT}")
    for r in range(4, 8):
        k(f"v_mov_b32 v{r}, 0")
    k("s_mov_b32 s41, 0xffff0000")
    k("s_mov_b32 s15, 0")
    k.label("stl")
    for i in range(16):
        k(f"s_add_u32 s16, s14, {i * HTP}")
        k(f"buffer_load_dword v{16+i}, v3, s[4:7], s16 offen")
    k(f"s_add_u32 s14, s14, {16 * HTP}")
    for i in range(16):
        k(f"s_waitcnt vmcnt({15-i})")
        k(f"v_lshlrev_b32 v8, 16, v{16+i}")
        k(f"v_and_b32 v9, s41, v{16+i}")
        k("v_add_f32 v4, v4, v8")
        k("v_fmac_f32 v5, v8, v8")
        k("v_add_f32 v6, v6, v9")
        k("v_fmac_f32 v7, v9, v9")
    k("s_add_u32 s15, s15, 1")
    k("s_cmp_lt_u32 s15, 5")
    k(f"s_cbranch_scc1 {k.L('stl')}")
    k("v_lshlrev_b32 v8, 4, v0")
    k("ds_write_b128 v8, v[4:7]")
    k("s_waitcnt lgkmcnt(0)")
    k("s_barrier")
    k("v_lshlrev_b32 v8, 4, v1")
    for gq in range(8):
        k(f"ds_read_b128 v[{16+4*gq}:{19+4*gq}], v8 offset:{gq*512}")
    k("s_waitcnt lgkmcnt(0)")
    for gq in range(1, 8):
        for c in range(4):
            k(f"v_add_f32 v{16+c}, v{16+c}, v{16+4*gq+c}")
    k("s_lshl_b32 s14, s2, 9")
    k(f"s_add_u32 s14, s14, {WS_ST}")
    k("v_cmp_gt_u32 vcc, 32, v0")
    k("s_and_saveexec_b64 s[16:17], vcc")
    k(f"s_cbranch_execz {k.L('stskip')}")
    k("buffer_store_dwordx4 v[16:19], v8, s[4:7], s14 offen sc1")
    k("s_waitcnt vmcnt(0)")
    k.label("stskip")
    k("s_mov_b64 exec, s[16:17]")
    k("s_barrier")
    k("v_cmp_eq_u32 vcc, 0, v0")
    k("s_and_saveexec_b64 s[16:17], vcc")
    k(f"s_cbranch_execz {k.L('end')}")
    k("s_lshl_b32 s14, s2, 2")
    k("v_mov_b32 v4, s14")
    k("v_mov_b32 v5, 1")
    k("buffer_store_dword v5, v4, s[52:55], 0 offen sc1")
    k.label("end")
    k("s_endpgm")
    return k, NS * STAGE, nwg, 256
```

```python
import os, struct
EXP = os.environ.get('EXP', '')
from gen import K, srd, srd_fin, KARG, WS_SIZE, WS_UT, WS_XT, WS_KB, WS_HT, WS_H, WS_HL, WS_WGT, WS_WUT, WS_WDT, WS_CS, WS_S1, L, D, N, F


def fbits(x):
    return "0x%08x" % struct.unpack("<I", struct.pack("<f", float(x)))[0]


HI = list(range(8)) + [256 + 2 * i for i in range(4)] + [512, 516, 768, 772] + [1024 + 256 * i for i in range(4)] + [2048]


def ln_core(k, VB, SUM, TMP, MEAN, RS, BP, NR=8):
    for i in range(NR):
        k(f"v_add_f32 v{SUM+i}, v{VB+i*10}, v{VB+i*10+1}")
        for e in range(2, 10):
            k(f"v_add_f32 v{SUM+i}, v{SUM+i}, v{VB+i*10+e}")

    def reduce8():
        for h in range(6):
            for i in range(NR):
                k(f"ds_bpermute_b32 v{TMP+i}, v{BP+h}, v{SUM+i}")
            k("s_waitcnt lgkmcnt(0)")
            for i in range(NR):
                k(f"v_add_f32 v{SUM+i}, v{SUM+i}, v{TMP+i}")
    reduce8()
    k("s_mov_b32 s40, 0x3acccccd")
    k("s_mov_b32 s41, 0xffff0000")
    for i in range(NR):
        k(f"v_mul_f32 v{MEAN+i}, s40, v{SUM+i}")
    for i in range(NR):
        k(f"v_sub_f32 v{TMP+i}, v{VB+i*10}, v{MEAN+i}")
        k(f"v_mul_f32 v{SUM+i}, v{TMP+i}, v{TMP+i}")
        for e in range(1, 10):
            k(f"v_sub_f32 v{TMP+i}, v{VB+i*10+e}, v{MEAN+i}")
            k(f"v_fmac_f32 v{SUM+i}, v{TMP+i}, v{TMP+i}")
    reduce8()
    for i in range(NR):
        k(f"v_mul_f32 v{TMP+i}, s40, v{SUM+i}")
        k(f"v_cvt_pk_bf16_f32 v{TMP+i}, v{TMP+i}, v{MEAN+i}")
        k(f"v_and_b32 v{MEAN+i}, s41, v{TMP+i}")
        k(f"v_lshlrev_b32 v{TMP+i}, 16, v{TMP+i}")
        k(f"v_add_f32 v{TMP+i}, 0x3727c5ac, v{TMP+i}")
        k(f"v_cvt_pk_bf16_f32 v{TMP+i}, v{TMP+i}, v{TMP+i}")
        k(f"v_lshlrev_b32 v{TMP+i}, 16, v{TMP+i}")
    for i in range(NR):
        k(f"v_sqrt_f32 v{TMP+i}, v{TMP+i}")
    k("s_nop 0")
    for i in range(NR):
        k(f"v_cvt_pk_bf16_f32 v{TMP+i}, v{TMP+i}, v{TMP+i}")
        k(f"v_lshlrev_b32 v{TMP+i}, 16, v{TMP+i}")
    for i in range(NR):
        k(f"v_rcp_f32 v{RS+i}, v{TMP+i}")
    k("s_nop 0")


def norm_pair(k, dst, a, ma, ra, b, mb, rb, t0, t1):
    k(f"v_sub_f32 v{t0}, v{a}, v{ma}")
    k(f"v_sub_f32 v{t1}, v{b}, v{mb}")
    k(f"v_cvt_pk_bf16_f32 v{t0}, v{t0}, v{t1}")
    k(f"v_and_b32 v{t1}, s41, v{t0}")
    k(f"v_lshlrev_b32 v{t0}, 16, v{t0}")
    k(f"v_mul_f32 v{t0}, v{t0}, v{ra}")
    k(f"v_mul_f32 v{t1}, v{t1}, v{rb}")
    k(f"v_cvt_pk_bf16_f32 v{dst}, v{t0}, v{t1}")


def bp_addrs(k, BP, lane):
    for h, m in enumerate([1, 2, 4, 8, 16, 32]):
        k(f"v_xor_b32 v{BP+h}, {m}, v{lane}")
        k(f"v_lshlrev_b32 v{BP+h}, 2, v{BP+h}")


SUM, TMP, MEAN, RS, BP, RAW = 16, 24, 32, 40, 48, 64
TSTR = 80


def ln_core_packed(k):
    SQ, TMP2 = 112, 120
    k("s_mov_b32 s40, 0x3acccccd")
    k("v_mov_b32 v6, 0x3f803f80")
    for i in range(8):
        k(f"v_mov_b32 v{SUM+i}, 0")
        k(f"v_mov_b32 v{SQ+i}, 0")
    for j in range(5):
        for i in range(8):
            r = RAW + i * 5 + j
            k(f"v_dot2c_f32_bf16 v{SUM+i}, v{r}, v6")
            k(f"v_dot2c_f32_bf16 v{SQ+i}, v{r}, v{r}")
    k("s_nop 2")
    for h in range(6):
        for i in range(8):
            k(f"ds_bpermute_b32 v{TMP+i}, v{BP+h}, v{SUM+i}")
        for i in range(8):
            k(f"ds_bpermute_b32 v{TMP2+i}, v{BP+h}, v{SQ+i}")
        k("s_waitcnt lgkmcnt(8)")
        for i in range(8):
            k(f"v_add_f32 v{SUM+i}, v{SUM+i}, v{TMP+i}")
        k("s_waitcnt lgkmcnt(0)")
        for i in range(8):
            k(f"v_add_f32 v{SQ+i}, v{SQ+i}, v{TMP2+i}")
    for i in range(8):
        k(f"v_mul_f32 v{MEAN+i}, s40, v{SUM+i}")
        k(f"v_mul_f32 v{TMP+i}, s40, v{SQ+i}")
        k(f"v_fma_f32 v{TMP+i}, -v{MEAN+i}, v{MEAN+i}, v{TMP+i}")
        k(f"v_max_f32 v{TMP+i}, 0, v{TMP+i}")
        k(f"v_cvt_pk_bf16_f32 v{TMP+i}, v{TMP+i}, v{MEAN+i}")
        k(f"v_and_b32 v{MEAN+i}, s41, v{TMP+i}")
        k(f"v_lshlrev_b32 v{TMP+i}, 16, v{TMP+i}")
        k(f"v_add_f32 v{TMP+i}, 0x3727c5ac, v{TMP+i}")
        k(f"v_cvt_pk_bf16_f32 v{TMP+i}, v{TMP+i}, v{TMP+i}")
        k(f"v_lshlrev_b32 v{TMP+i}, 16, v{TMP+i}")
    for i in range(8):
        k(f"v_sqrt_f32 v{TMP+i}, v{TMP+i}")
    k("s_nop 0")
    for i in range(8):
        k(f"v_cvt_pk_bf16_f32 v{TMP+i}, v{TMP+i}, v{TMP+i}")
        k(f"v_lshlrev_b32 v{TMP+i}, 16, v{TMP+i}")
    for i in range(8):
        k(f"v_rcp_f32 v{RS+i}, v{TMP+i}")
    k("s_nop 0")


def norm_raw(k, dst, r, i):
    k(f"v_lshlrev_b32 v6, 16, v{r}")
    k(f"v_and_b32 v7, s41, v{r}")
    k(f"v_sub_f32 v6, v6, v{MEAN+i}")
    k(f"v_sub_f32 v7, v7, v{MEAN+i}")
    k(f"v_cvt_pk_bf16_f32 v6, v6, v7")
    k(f"v_and_b32 v7, s41, v6")
    k(f"v_lshlrev_b32 v6, 16, v6")
    k(f"v_mul_f32 v6, v6, v{RS+i}")
    k(f"v_mul_f32 v7, v7, v{RS+i}")
    k(f"v_cvt_pk_bf16_f32 v{dst}, v6, v7")


def tile_out(k, src_regs_fn, ws_base):
    for (j0, j1) in [(0, 5)]:
        for j in range(j0, j1):
            for ip in range(4):
                r0, r1 = src_regs_fn(2 * ip, j), src_regs_fn(2 * ip + 1, j)
                k(f"v_and_b32 v6, 0xffff, v{r0}")
                k(f"v_lshl_or_b32 v{104+ip}, v{r1}, 16, v6")
                k(f"v_lshrrev_b32 v6, 16, v{r0}")
                k(f"v_and_or_b32 v{108+ip}, v{r1}, s41, v6")
            k(f"ds_write_b128 v8, v[104:107] offset:{(j-j0)*128*TSTR}")
            k(f"ds_write_b128 v8, v[108:111] offset:{(j-j0)*128*TSTR + TSTR}")
        k("s_waitcnt lgkmcnt(0)")
        k("s_barrier")
        for it in range(2 * (j1 - j0)):
            k(f"ds_read_b128 v[{104+4*(it%4)}:{107+4*(it%4)}], v9 offset:{it*64*TSTR}")
            k(f"s_mov_b32 s15, {ws_base + (2*j0+it)*64*4096}")
            k("s_waitcnt lgkmcnt(0)")
            k(f"buffer_store_dwordx4 v[{104+4*(it%4)}:{107+4*(it%4)}], v10, s[8:11], s15 offen")
        k("s_barrier")


def role_ln1(k):
    if 'noln1' in EXP:
        k("s_endpgm")
    k("v_and_b32 v1, 63, v0")
    k("v_lshrrev_b32 v2, 6, v0")
    k("s_lshl_b32 s3, s2, 5")
    k("v_lshlrev_b32 v4, 3, v2")
    k("v_add_u32 v4, s3, v4")
    k("s_movk_i32 s12, 1280")
    k("v_mul_lo_u32 v3, v4, s12")
    k("v_lshl_add_u32 v3, v1, 2, v3")
    for i in range(8):
        k(f"s_movk_i32 s13, {i*1280}")
        for j in range(5):
            k(f"buffer_load_dword v{RAW+i*5+j}, v3, s[4:7], s13 offen offset:{j*256}")
    bp_addrs(k, BP, 1)
    k("s_mov_b32 s41, 0xffff0000")
    k(f"v_mul_u32_u24 v8, {2*TSTR}, v1")
    k("v_lshl_add_u32 v8, v2, 4, v8")
    k("v_lshrrev_b32 v9, 2, v0")
    k("v_and_b32 v11, 3, v0")
    k("v_lshlrev_b32 v10, 12, v9")
    k("v_lshl_add_u32 v10, v11, 4, v10")
    k("s_lshl_b32 s3, s2, 6")
    k("v_add_u32 v10, s3, v10")
    k(f"v_mul_u32_u24 v9, {TSTR}, v9")
    k("v_lshl_add_u32 v9, v11, 4, v9")
    k("s_waitcnt vmcnt(0)")
    tile_out(k, lambda i, j: RAW + i * 5 + j, WS_XT)
    ln_core_packed(k)
    for i in range(8):
        k(f"v_mov_b32 v{104+2*i}, v{MEAN+i}")
        k(f"v_mov_b32 v{105+2*i}, v{RS+i}")
    k("v_lshlrev_b32 v5, 3, v4")
    k(f"s_mov_b32 s15, {WS_S1}")
    k("v_cmp_eq_u32 vcc, 0, v1")
    k("s_and_saveexec_b64 s[16:17], vcc")
    for q in range(4):
        k(f"buffer_store_dwordx4 v[{104+4*q}:{107+4*q}], v5, s[8:11], s15 offen offset:{16*q}")
    k("s_endpgm")


def role_transpose(k, tag, sreg, R, C, ws_dst, wg_reg):
    if 'notr' in EXP:
        k("s_endpgm")
    ntile_c = C // 64
    magic = (1 << 32) // ntile_c + 1
    k(f"s_mov_b32 s12, {magic}")
    k(f"s_mul_hi_u32 s13, s{wg_reg}, s12")
    k(f"s_mul_i32 s14, s13, {ntile_c}")
    k(f"s_sub_u32 s14, s{wg_reg}, s14")
    k("v_lshrrev_b32 v1, 2, v0")
    k("v_and_b32 v2, 3, v0")
    k("s_lshl_b32 s15, s13, 6")
    k("v_add_u32 v3, s15, v1")
    k(f"s_movk_i32 s16, {C*2}")
    k("v_mul_lo_u32 v3, v3, s16")
    k("s_lshl_b32 s17, s14, 7")
    k("v_lshl_add_u32 v4, v2, 5, s17")
    k("v_add_u32 v3, v3, v4")
    k(f"buffer_load_dwordx4 v[8:11], v3, s[{sreg}:{sreg+3}], 0 offen")
    k(f"buffer_load_dwordx4 v[12:15], v3, s[{sreg}:{sreg+3}], 0 offen offset:16")
    k("s_movk_i32 s18, 2080")
    k("v_mul_lo_u32 v5, v2, s18")
    k("v_lshl_add_u32 v5, v1, 1, v5")
    k("s_waitcnt vmcnt(0)")
    for e in range(16):
        r = 8 + e // 2
        if e % 2 == 0:
            k(f"ds_write_b16 v5, v{r} offset:{e*130}")
        else:
            k(f"ds_write_b16_d16_hi v5, v{r} offset:{e*130}")
    k("s_waitcnt lgkmcnt(0)")
    k("s_barrier")
    k("s_movk_i32 s18, 130")
    k("v_mul_lo_u32 v5, v1, s18")
    k("v_lshl_add_u32 v5, v2, 5, v5")
    k("ds_read_b128 v[8:11], v5")
    k("ds_read_b128 v[12:15], v5 offset:16")
    k("s_lshl_b32 s15, s14, 6")
    k("v_add_u32 v3, s15, v1")
    k(f"s_movk_i32 s16, {R*2}")
    k("v_mul_lo_u32 v3, v3, s16")
    k("s_lshl_b32 s17, s13, 7")
    k("v_lshl_add_u32 v4, v2, 5, s17")
    k("v_add_u32 v3, v3, v4")
    k(f"s_mov_b32 s19, {ws_dst}")
    k("s_waitcnt lgkmcnt(0)")
    k("buffer_store_dwordx4 v[8:11], v3, s[8:11], s19 offen")
    k("buffer_store_dwordx4 v[12:15], v3, s[8:11], s19 offen offset:16")
    k("s_endpgm")


RSTR = 144
ARR = 24 * RSTR
WAVE_LDS = 2 * ARR
TB = 4 * WAVE_LDS
KG_LDS = TB + 8448


def role_kgen(k, ch_reg, AB=0, TB=TB, RLDS=None):
    if 'nokgen' in EXP:
        k("s_endpgm")
    k("v_and_b32 v1, 63, v0")
    k("v_lshrrev_b32 v2, 6, v0")
    k("v_and_b32 v3, 31, v1")
    k("v_lshrrev_b32 v4, 5, v1")
    k(f"s_lshl_b32 s12, s{ch_reg}, 8")
    k("v_lshl_add_u32 v5, v2, 5, v3")
    k("v_lshlrev_b32 v5, 1, v5")
    k("v_add_u32 v5, s12, v5")
    for idx, s in enumerate([20, 24, 28, 32]):
        k(f"buffer_load_ushort v{8+idx}, v5, s[{s}:{s+3}], 0 offen")
    k(f"s_lshl_b32 s12, s{ch_reg}, 1")
    k("v_mov_b32 v6, s12")
    k("buffer_load_ushort v12, v6, s[36:39], 0 offen")
    k(f"v_mul_u32_u24 v20, {WAVE_LDS}, v2")
    if AB:
        k(f"v_add_u32 v20, {AB}, v20")
    k("v_lshl_add_u32 v21, v3, 2, v20")
    k(f"v_mul_u32_u24 v23, {11*RSTR}, v4")
    k("v_add_u32 v21, v21, v23")
    k("v_cvt_f32_u32 v22, v4")
    k("v_lshlrev_b32 v29, 3, v3")
    k("v_cvt_f32_u32 v29, v29")
    k("v_lshlrev_b32 v28, 4, v4")
    k("s_mov_b32 s41, 0xffff0000")
    k("s_mov_b32 s42, 0x3fb8aa3b")
    k("s_waitcnt vmcnt(0)")
    for r in range(8, 13):
        k(f"v_lshlrev_b32 v{r}, 16, v{r}")
    k("v_mul_f32 v12, s42, v12")
    k("v_mul_f32 v8, s42, v8")
    k("v_exp_f32 v12, v12")
    k("v_exp_f32 v8, v8")
    k("s_nop 0")
    k("v_cvt_pk_bf16_f32 v12, v12, v8")
    k("v_and_b32 v8, s41, v12")
    k("v_lshlrev_b32 v12, 16, v12")
    k("v_mul_f32 v8, v8, v12")
    k("v_mul_f32 v8, s42, v8")
    k("v_sub_f32 v8, 0, v8")
    k("v_mul_f32 v9, v9, v12")
    k("v_mul_f32 v9, 0x3e22f983, v9")
    k("v_mul_f32 v10, v10, v12")
    k("v_mul_f32 v11, v11, v12")
    k("v_add_f32 v10, v10, v10")
    k("v_add_f32 v11, v11, v11")
    for s_ in range(4):
        for t in range(4):
            r = 80 + 2 * (4 * s_ + t)
            k(f"ds_bpermute_b32 v{r}, v28, v8 offset:{(8*s_+t)*4}")
            k(f"ds_bpermute_b32 v{r+1}, v28, v9 offset:{(8*s_+t)*4}")
    for t in range(11):
        p0 = HI[t]
        p1 = HI[min(11 + t, 20)]
        k(f"v_mov_b32 v30, {fbits(p0)}")
        k(f"v_fmamk_f32 v30, v22, {fbits(p1 - p0)}, v30")
        k("v_mul_f32 v31, v8, v30")
        k("v_mul_f32 v32, v9, v30")
        k("v_exp_f32 v31, v31")
        k("v_fract_f32 v32, v32")
        k("s_nop 0")
        k("v_cos_f32 v33, v32")
        k("v_sin_f32 v34, v32")
        k("s_nop 0")
        k("v_mul_f32 v36, v10, v33")
        k("v_mul_f32 v37, v10, v34")
        k("v_fma_f32 v36, -v11, v34, v36")
        k("v_fma_f32 v37, v11, v33, v37")
        k("v_mul_f32 v36, v36, v31")
        k("v_mul_f32 v37, v37, -v31")
        k("v_cvt_pk_bf16_f32 v38, v36, v37")
        k("v_lshlrev_b32 v39, 16, v38")
        k("v_and_b32 v40, s41, v38")
        k("v_sub_f32 v36, v36, v39")
        k("v_sub_f32 v37, v37, v40")
        k("v_cvt_pk_bf16_f32 v39, v36, v37")
        k(f"ds_write_b32 v21, v38 offset:{t*RSTR}")
        k(f"ds_write_b32 v21, v39 offset:{t*RSTR + ARR}")
    k("s_waitcnt lgkmcnt(0)")
    k(f"v_mul_u32_u24 v47, {RSTR}, v3")
    k("v_min_u32 v47, %d, v47" % (23 * RSTR))
    k("v_lshl_add_u32 v47, v4, 4, v47")
    k("v_add_u32 v47, v47, v20")
    ACC = 64
    for r in range(16):
        k(f"v_mov_b32 v{ACC+r}, 0")
    for s_ in range(4):
        bh = 48 + 4 * (s_ & 1)
        ah = 112 + 8 * (s_ & 1)
        k(f"ds_read_b128 v[{ah}:{ah+3}], v47 offset:{s_*32}")
        k(f"ds_read_b128 v[{ah+4}:{ah+7}], v47 offset:{ARR + s_*32}")
        for t in range(4):
            r = 80 + 2 * (4 * s_ + t)
            k(f"v_mul_f32 v{31+4*t-0}, v{r}, v29")
            k(f"v_mul_f32 v{32+4*t}, v{r+1}, v29")
        for t in range(4):
            k(f"v_exp_f32 v{31+4*t}, v{31+4*t}")
            k(f"v_fract_f32 v{32+4*t}, v{32+4*t}")
        for t in range(4):
            k(f"v_cos_f32 v{33+4*t}, v{32+4*t}")
            k(f"v_sin_f32 v{34+4*t if t < 3 else 30}, v{32+4*t}")
        k("s_nop 0")
        for t in range(4):
            sn = 34 + 4 * t if t < 3 else 30
            k(f"v_mul_f32 v{33+4*t}, v{33+4*t}, v{31+4*t}")
            k(f"v_mul_f32 v{sn}, v{sn}, v{31+4*t}")
            k(f"v_cvt_pk_bf16_f32 v{bh+t}, v{33+4*t}, v{sn}")
        k("s_waitcnt lgkmcnt(0)")
        k("s_nop 0")
        k(f"v_mfma_f32_32x32x16_bf16 v[{ACC}:{ACC+15}], v[{ah}:{ah+3}], v[{bh}:{bh+3}], v[{ACC}:{ACC+15}]")
        k(f"v_mfma_f32_32x32x16_bf16 v[{ACC}:{ACC+15}], v[{ah+4}:{ah+7}], v[{bh}:{bh+3}], v[{ACC}:{ACC+15}]")
    k("v_lshlrev_b32 v42, 9, v4")
    k("v_lshl_add_u32 v42, v3, 2, v42")
    k("v_add_u32 v42, v42, v20")
    k("s_nop 7")
    k("s_nop 3")
    for r in range(16):
        row0 = 8 * (r >> 2) + (r & 3)
        if row0 < 21:
            k(f"ds_write_b32 v42, v{ACC+r} offset:{row0*128}")
    k("s_waitcnt lgkmcnt(0)")
    k("s_barrier")
    for it in range(3):
        k(f"v_add_u32 v43, {it*256}, v0")
        k("v_lshlrev_b32 v44, 2, v43")
        for w in range(4):
            k(f"ds_read_b32 v{45+w}, v44 offset:{AB + w*WAVE_LDS}")
        k("v_lshrrev_b32 v50, 5, v43")
        k("v_and_b32 v51, 31, v43")
        k("v_mov_b32 v52, v50")
        k("v_subrev_u32 v53, 8, v50")
        k("v_lshlrev_b32 v53, 1, v53")
        k("v_add_u32 v53, 0x100, v53")
        k("v_cmp_le_u32 vcc, 8, v50")
        k("v_subrev_u32 v54, 12, v50")
        k("v_and_b32 v55, 1, v54")
        k("v_cndmask_b32 v52, v52, v53, vcc")
        k("v_lshlrev_b32 v55, 2, v55")
        k("v_lshrrev_b32 v54, 1, v54")
        k("v_lshl_add_u32 v54, v54, 8, v55")
        k("v_add_u32 v54, 0x200, v54")
        k("v_cmp_le_u32 vcc, 12, v50")
        k("v_subrev_u32 v53, 16, v50")
        k("v_lshlrev_b32 v53, 8, v53")
        k("v_cndmask_b32 v52, v52, v54, vcc")
        k("v_add_u32 v53, 0x400, v53")
        k("v_cmp_le_u32 vcc, 16, v50")
        k("s_nop 1")
        k("v_cndmask_b32 v52, v52, v53, vcc")
        k("v_lshl_add_u32 v52, v51, 3, v52")
        k("v_min_u32 v52, 0x801, v52")
        k("v_cmp_gt_u32 vcc, 0x2a0, v43")
        k("v_mov_b32 v53, 0x801")
        k("s_nop 0")
        k("v_cndmask_b32 v52, v53, v52, vcc")
        k("v_lshlrev_b32 v52, 2, v52")
        k("s_waitcnt lgkmcnt(0)")
        k("v_add_f32 v45, v45, v46")
        k("v_add_f32 v47, v47, v48")
        k("v_add_f32 v45, v45, v47")
        k(f"ds_write_b32 v52, v45 offset:{TB}")
    k("s_waitcnt lgkmcnt(0)")
    k("s_barrier")
    k("v_lshlrev_b32 v43, 3, v0")
    k("v_sub_u32 v43, 0x7ff, v43")
    for e in range(8):
        k(f"v_subrev_u32 v44, {e}, v43")
        k("v_cvt_f32_u32 v44, v44")
        k("v_cvt_pk_bf16_f32 v44, v44, v44")
        k("v_lshlrev_b32 v44, 16, v44")
        k("v_cvt_u32_f32 v44, v44")
        k("v_lshlrev_b32 v44, 2, v44")
        k(f"ds_read_b32 v{48+e}, v44 offset:{TB}")
    k(f"s_lshl_b32 s12, s{ch_reg}, 12")
    k(f"s_add_u32 s12, s12, {WS_KB}")
    k("v_lshlrev_b32 v44, 4, v0")
    k("s_waitcnt lgkmcnt(0)")
    for e in range(4):
        k(f"v_cvt_pk_bf16_f32 v{56+e}, v{48+2*e}, v{49+2*e}")
    if RLDS is None:
        k("buffer_store_dwordx4 v[56:59], v44, s[8:11], s12 offen")
        k("s_endpgm")
    else:
        k(f"ds_write_b128 v44, v[56:59] offset:{RLDS}")


def role_colsum(k, wg_reg):
    k(f"s_mul_i32 s14, s{wg_reg}, 40960")
    k("v_lshlrev_b32 v1, 4, v0")
    for i in range(10):
        k(f"s_add_u32 s16, s14, {i*4096}")
        k(f"buffer_load_dwordx4 v[{32+4*i}:{35+4*i}], v1, s[52:55], s16 offen")
    k(f"s_cmp_ge_u32 s{wg_reg}, 27")
    k("s_cselect_b32 s44, s48, s44")
    k("s_cselect_b32 s45, s49, s45")
    k("s_cselect_b32 s13, 27, 0")
    k(f"s_sub_u32 s13, s{wg_reg}, s13")
    k("v_and_b32 v1, 31, v0")
    k("v_lshrrev_b32 v2, 5, v0")
    k(f"v_mul_u32_u24 v3, {80 * F * 2}, v2")
    k("v_lshl_add_u32 v3, v1, 2, v3")
    k("s_lshl_b32 s14, s13, 7")
    k("v_mov_b32 v4, 0")
    k("v_mov_b32 v5, 0")
    k("s_mov_b32 s41, 0xffff0000")
    k("s_mov_b32 s15, 0")
    k.label("csl")
    for i in range(16):
        k(f"s_add_u32 s16, s14, {i * F * 2}")
        k(f"buffer_load_dword v{8+i}, v3, s[44:47], s16 offen")
    k(f"s_add_u32 s14, s14, {16 * F * 2}")
    for i in range(16):
        k(f"s_waitcnt vmcnt({15-i})")
        k(f"v_lshlrev_b32 v6, 16, v{8+i}")
        k(f"v_and_b32 v7, s41, v{8+i}")
        k("v_add_f32 v4, v4, v6")
        k("v_add_f32 v5, v5, v7")
    k("s_add_u32 s15, s15, 1")
    k("s_cmp_lt_u32 s15, 5")
    k(f"s_cbranch_scc1 {k.L('csl')}")
    k("v_lshlrev_b32 v6, 3, v0")
    k("ds_write_b64 v6, v[4:5]")
    k("s_waitcnt lgkmcnt(0)")
    k("s_barrier")
    k("v_lshlrev_b32 v6, 3, v1")
    for gq in range(8):
        k(f"ds_read_b64 v[{8+2*gq}:{9+2*gq}], v6 offset:{gq*256}")
    k("s_waitcnt lgkmcnt(0)")
    for gq in range(1, 8):
        k(f"v_add_f32 v8, v8, v{8+2*gq}")
        k(f"v_add_f32 v9, v9, v{9+2*gq}")
    k(f"s_lshl_b32 s14, s{wg_reg}, 8")
    k(f"s_add_u32 s14, s14, {WS_CS}")
    k("v_cmp_gt_u32 vcc, 32, v0")
    k("s_and_saveexec_b64 s[16:17], vcc")
    k(f"s_cbranch_execz {k.L('end')}")
    k("buffer_store_dwordx2 v[8:9], v6, s[8:11], s14 offen")
    k("s_endpgm")


def role_touch(k, wg_reg):
    k(f"s_mul_i32 s14, s{wg_reg}, 81920")
    k("v_lshlrev_b32 v1, 4, v0")
    for i in range(20):
        k(f"s_add_u32 s16, s14, {i*4096}")
        k(f"buffer_load_dwordx4 v[{8+4*(i%8)}:{11+4*(i%8)}], v1, s[52:55], s16 offen")
    k("s_waitcnt vmcnt(0)")
    k("s_endpgm")


def gen_prep(name):
    k = K(name, 128)
    NKG, NLN, NCS = int(os.environ.get('NKG','640')), 64, 54
    NTO = 0
    total = NKG + NLN + NCS + NTO
    k(f"s_cmp_ge_u32 s2, {total}")
    k(f"s_cbranch_scc1 {k.L('end')}")
    t = [srd(k, 4, KARG['u'], L * D * 2), srd(k, 8, KARG['ws'], WS_SIZE),
         srd(k, 20, KARG['logA'], D * N * 2), srd(k, 24, KARG['Aim'], D * N * 2), srd(k, 28, KARG['Cr'], D * N * 2),
         srd(k, 32, KARG['Ci'], D * N * 2), srd(k, 36, KARG['logdt'], D * 2),
         srd(k, 44, KARG['wg'], D * F * 2), srd(k, 48, KARG['wu'], D * F * 2), srd(k, 52, KARG['wd'], D * F * 2)]
    k("s_waitcnt lgkmcnt(0)")
    for x in t:
        srd_fin(k, x)
    k(f"s_cmp_lt_u32 s2, {NLN}")
    k(f"s_cbranch_scc1 {k.L('ln1')}")
    k(f"s_sub_u32 s56, s2, {NLN}")
    k(f"s_cmp_lt_u32 s56, {NCS}")
    k(f"s_cbranch_scc1 {k.L('cs')}")
    k(f"s_sub_u32 s56, s56, {NCS}")
    k(f"s_cmp_lt_u32 s56, {NTO}")
    k(f"s_cbranch_scc1 {k.L('to')}")
    k(f"s_sub_u32 s56, s56, {NTO}")
    role_kgen(k, 56)
    k.label("to")
    role_touch(k, 56)
    k.label("cs")
    role_colsum(k, 56)
    k.label("ln1")
    role_ln1(k)
    k.label("end")
    k("s_endpgm")
    if 'wgt' in EXP:
        out = []
        for ln in k.lines:
            if ln.strip() == "s_endpgm":
                out.append("    s_branch " + k.L('fin'))
            else:
                out.append(ln)
        k.lines = ["    s_memrealtime s[90:91]"] + out
        k.label("fin")
        k("s_mov_b64 exec, -1")
        k("s_waitcnt vmcnt(0)")
        k("s_memrealtime s[92:93]")
        k("s_load_dwordx2 s[96:97], s[0:1], 104")
        k("s_waitcnt lgkmcnt(0)")
        k("s_and_b32 s97, s97, 0xffff")
        k("s_mov_b32 s98, 0x10000000")
        k("s_mov_b32 s99, 0x20000")
        k("v_mov_b32 v0, s90")
        k("v_mov_b32 v1, s92")
        k("s_lshl_b32 s94, s2, 4")
        k("v_mov_b32 v4, s94")
        k("s_mov_b32 s95, 0x2c00000")
        k("buffer_store_dwordx2 v[0:1], v4, s[96:99], s95 offen")
        k("s_endpgm")
    return k, max(KG_LDS, 640 * TSTR), total


def gen_ln2(name):
    k = K(name, 128)
    total = 64
    k(f"s_cmp_ge_u32 s2, {total}")
    k(f"s_cbranch_scc1 {k.L('end')}")
    t = [srd(k, 8, KARG['ws'], WS_SIZE)]
    k("v_and_b32 v1, 63, v0")
    k("v_lshrrev_b32 v2, 6, v0")
    k("v_lshrrev_b32 v9, 2, v0")
    k("v_and_b32 v11, 3, v0")
    k("v_lshlrev_b32 v10, 12, v9")
    k("v_lshl_add_u32 v10, v11, 4, v10")
    k("s_lshl_b32 s3, s2, 6")
    k("v_add_u32 v10, s3, v10")
    k(f"v_mul_u32_u24 v9, {TSTR}, v9")
    k("v_lshl_add_u32 v9, v11, 4, v9")
    k("s_waitcnt lgkmcnt(0)")
    for x in t:
        srd_fin(k, x)
    for it in range(10):
        k(f"s_mov_b32 s15, {WS_HT + it*64*4096}")
        k(f"buffer_load_dwordx4 v[{RAW+4*it}:{RAW+4*it+3}], v10, s[8:11], s15 offen")
    bp_addrs(k, BP, 1)
    k("s_lshl_b32 s3, s2, 5")
    k("v_lshlrev_b32 v4, 3, v2")
    k("v_add_u32 v4, s3, v4")
    k("s_movk_i32 s12, 1280")
    k("v_mul_lo_u32 v3, v4, s12")
    k("v_lshl_add_u32 v3, v1, 2, v3")
    k(f"v_mul_u32_u24 v8, {2*TSTR}, v1")
    k("v_lshl_add_u32 v8, v2, 4, v8")
    k("s_mov_b32 s41, 0xffff0000")
    for it in range(10):
        k(f"s_waitcnt vmcnt({9-it})")
        k(f"ds_write_b128 v9, v[{RAW+4*it}:{RAW+4*it+3}] offset:{it*64*TSTR}")
    k("s_waitcnt lgkmcnt(0)")
    k("s_barrier")
    for j in range(5):
        k(f"ds_read_b128 v[104:107], v8 offset:{j*128*TSTR}")
        k(f"ds_read_b128 v[108:111], v8 offset:{j*128*TSTR + TSTR}")
        k("s_waitcnt lgkmcnt(0)")
        for ip in range(4):
            k(f"v_and_b32 v6, 0xffff, v{104+ip}")
            k(f"v_lshl_or_b32 v{RAW+(2*ip)*5+j}, v{108+ip}, 16, v6")
            k(f"v_lshrrev_b32 v6, 16, v{104+ip}")
            k(f"v_and_or_b32 v{RAW+(2*ip+1)*5+j}, v{108+ip}, s41, v6")
    for i in range(8):
        k(f"s_mov_b32 s16, {WS_H + i*1280}")
        for j in range(5):
            k(f"buffer_store_dword v{RAW+i*5+j}, v3, s[8:11], s16 offen offset:{j*256}")
    ln_core_packed(k)
    for i in range(8):
        k(f"s_mov_b32 s15, {WS_HL + i*1280}")
        for j in range(5):
            o = 104 + (i * 5 + j) % 8
            norm_raw(k, o, RAW + i * 5 + j, i)
            k(f"buffer_store_dword v{o}, v3, s[8:11], s15 offen offset:{j*256}")
    k.label("end")
    k("s_endpgm")
    return k, 640 * TSTR, total
```
